```python
import torch

def _softmax(x, axis=-1):
    return torch.softmax(x, dim=axis)
def _gelu(x):
    return torch.nn.functional.gelu(x, approximate="tanh")
def _silu(x):
    return torch.nn.functional.silu(x)
def _sigmoid(x):
    return torch.sigmoid(x)
def _layernorm(x, axis=-1, eps=1e-5):
    m = x.mean(dim=axis, keepdim=True)
    v = x.var(dim=axis, keepdim=True, unbiased=False)
    return (x - m) / torch.sqrt(v + eps)
def _scatter_add(tgt, idx, src, axis=0):
    return tgt.clone().index_add_(axis, idx, src)
def _segment_sum(src, seg, n):
    out = torch.zeros((n,) + src.shape[1:], dtype=src.dtype)
    return out.index_add_(0, seg, src)
def _pad(x, pw):
    flat = tuple(v for pair in reversed(pw) for v in pair)
    return torch.nn.functional.pad(x, flat)

kernel_name = 'concat_heads__ssm_conv_s5__mha_block__prompt'

def setup_inputs():

    _w = (lambda a: (lambda t: t.to(torch.bfloat16) if t.is_floating_point() else t)(torch.as_tensor(a)))
    def _A_setup():
        B, S, D = 1, 2048, 448
        P = D
        Lambda_re = -0.5 * (lambda _x: torch.exp(torch.as_tensor(_x)))((lambda *s: torch.randn(*s, dtype=torch.bfloat16) * 0.4)(P))
        Lambda_im = (lambda *s: torch.randn(*s, dtype=torch.bfloat16) * 0.8)(P) * 1.0
        B_re = (lambda *s: torch.randn(*s, dtype=torch.bfloat16) * 0.4)(P, D) * (D ** -0.5)
        B_im = (lambda *s: torch.randn(*s, dtype=torch.bfloat16) * 0.4)(P, D) * (D ** -0.5)
        C_re = (lambda *s: torch.randn(*s, dtype=torch.bfloat16) * 0.4)(D, P) * (P ** -0.5)
        C_im = (lambda *s: torch.randn(*s, dtype=torch.bfloat16) * 0.4)(D, P) * (P ** -0.5)
        log_dt = (lambda *s: torch.randn(*s, dtype=torch.bfloat16) * 0.4)(P) * 0.3 - 2.0
        Dskip = (lambda *s: torch.randn(*s, dtype=torch.bfloat16) * 0.05)(D)
        return {
            "x": _w((lambda *s: torch.randn(*s, dtype=torch.bfloat16) * 0.05)(B, S, D)),
            "Lambda_re": _w(Lambda_re),
            "Lambda_im": _w(Lambda_im),
            "B_re": _w(B_re),
            "B_im": _w(B_im),
            "C_re": _w(C_re),
            "C_im": _w(C_im),
            "log_dt": _w(log_dt),
            "Dskip": _w(Dskip),
        }
    _A_in = _A_setup()

    def _B_setup():
        B, S, D, H = 1, 2048, 448, 16
        return {
            "x": _w((lambda *s: torch.randn(*s, dtype=torch.bfloat16) * 0.2)(B, S, D)),
            "wqkv": _w((lambda *s: torch.randn(*s, dtype=torch.bfloat16) * 0.2)(D, 3 * D)),
            "wo": _w((lambda *s: torch.randn(*s, dtype=torch.bfloat16) * 0.05)(D, D)),
        }
    _B_in = _B_setup()

    return {
        "A_x": _A_in["x"],
        "A_Lambda_re": _A_in["Lambda_re"],
        "A_Lambda_im": _A_in["Lambda_im"],
        "A_B_re": _A_in["B_re"],
        "A_B_im": _A_in["B_im"],
        "A_C_re": _A_in["C_re"],
        "A_C_im": _A_in["C_im"],
        "A_log_dt": _A_in["log_dt"],
        "A_Dskip": _A_in["Dskip"],
        "B_x": _B_in["x"],
        "B_wqkv": _B_in["wqkv"],
        "B_wo": _B_in["wo"],
    }

def reference(A_x, A_Lambda_re, A_Lambda_im, A_B_re, A_B_im, A_C_re, A_C_im, A_log_dt, A_Dskip, B_x, B_wqkv, B_wo):
    def _A_ref(x, Lambda_re, Lambda_im, B_re, B_im, C_re, C_im, log_dt, Dskip):
        Bsz, L, H = x.shape
        Lam = Lambda_re + 1j * Lambda_im
        Bmat = B_re + 1j * B_im
        Cmat = C_re + 1j * C_im
        dt = torch.exp(log_dt)
        Lam_bar = torch.exp(dt * Lam)
        B_bar = ((Lam_bar - 1.0) / Lam)[:, None] * Bmat
        Bu = torch.einsum("bld,pd->blp", x + 0j, B_bar)
        h = torch.zeros_like(Bu[:, 0, :])
        hs = []
        for t in range(L):
            h = Lam_bar[None, :] * h + Bu[:, t, :]
            hs.append(h)
        hseq = torch.stack(hs, 1)
        y = 2.0 * torch.einsum("blp,dp->bld", hseq, Cmat).real + x * Dskip[None, None, :]
        return y

    def _B_ref(x, wqkv, wo):
        B, S, D = x.shape
        H = 16
        Dh = D // H
        qkv = (lambda x, *d: x.permute(*d))((x @ wqkv).reshape(B, S, 3, H, Dh), 2, 0, 3, 1, 4)
        q, k, v = qkv[0], qkv[1], qkv[2]
        scores = torch.einsum("bhqd,bhkd->bhqk", q, k) * (Dh ** -0.5)
        p = _softmax(scores, axis=-1)
        o = torch.einsum("bhqk,bhkd->bhqd", p, v)
        return (lambda x, *d: x.permute(*d))(o, 0, 2, 1, 3).reshape(B, S, D) @ wo

    a = _A_ref(A_x, A_Lambda_re, A_Lambda_im, A_B_re, A_B_im, A_C_re, A_C_im, A_log_dt, A_Dskip)
    b = _B_ref(B_x, B_wqkv, B_wo)
    return torch.concatenate([a, b], axis=-1)
```

```python
class Asm:
    def __init__(self): self.l=[]
    def __call__(self, s):
        for ln in s.strip('\n').split('\n'):
            self.l.append('    '+ln.strip() if not ln.strip().endswith(':') else ln.strip())
    def label(self, n): self.l.append(n+':')
    def text(self): return '\n'.join(self.l)+'\n'
def vr(a,n): return f"v[{a}:{a+n-1}]" if n>1 else f"v{a}"
def sr(a,n): return f"s[{a}:{a+n-1}]" if n>1 else f"s{a}"
KA=dict(A_x=0,Lre=8,Lim=16,B_re=24,B_im=32,C_re=40,C_im=48,logdt=56,Dskip=64,B_x=72,wqkv=80,wo=88,out=96,dbg=104,ws=112)
WS_QF=0x000000; WS_KF=0x200000; WS_VF=0x400000; WS_HL=0x600000; WS_SR=0xD00000; WS_EC=0xD80000
WS_HB=0xE00000; WS_OB=0x1200000
SZ_QF=0x200000; SZ_HL=2048*448*8; SZ_SR=128*448*8; SZ_EC=16*448*8; SZ_HB=2048*896*2; SZ_OB=2048*448*2
SZ_X=2048*448*2; SZ_W=448*448*2; SZ_WQKV=448*1344*2; SZ_VEC=448*2; SZ_OUT=2048*896*4

def srd(a, d, ptr, size, off=0):
    if off:
        a(f"s_add_u32 s{d}, s{ptr}, {hex(off)}")
        a(f"s_addc_u32 s{d+1}, s{ptr+1}, 0")
    else:
        a(f"s_mov_b32 s{d}, s{ptr}")
        a(f"s_mov_b32 s{d+1}, s{ptr+1}")
    a(f"s_mov_b32 s{d+2}, {hex(size)}")
    a(f"s_mov_b32 s{d+3}, 0x20000")

def ssm_consts(a, vP2, S_lre, S_lim, S_ldt, t, want_coef=True):
    lr,li,cr,ci,A,B,D,T1,T2,T3=[t+i for i in range(10)]
    a(f"""buffer_load_ushort v{A}, v{vP2}, {sr(S_lre,4)}, 0 offen
buffer_load_ushort v{B}, v{vP2}, {sr(S_lim,4)}, 0 offen
buffer_load_ushort v{D}, v{vP2}, {sr(S_ldt,4)}, 0 offen
s_waitcnt vmcnt(0)""")
    ssm_consts_math(a,t,want_coef)

def cvt_bf16_round(a, dst, src):
    a(f"v_cvt_pk_bf16_f32 v{dst}, v{src}, v{src}")
    a(f"v_lshlrev_b32 v{dst}, 16, v{dst}")

def ssm_consts_math(a,t,want_coef=True):
    lr,li,cr,ci,A,B,D,T1,T2,T3=[t+i for i in range(10)]
    a(f"""v_lshlrev_b32 v{A}, 16, v{A}
v_lshlrev_b32 v{B}, 16, v{B}
v_lshlrev_b32 v{D}, 16, v{D}
v_mul_f32 v{D}, 0x3fb8aa3b, v{D}
v_exp_f32 v{D}, v{D}
s_nop 0""")
    cvt_bf16_round(a,D,D)
    a(f"""v_mul_f32 v{T1}, v{D}, v{A}
v_mul_f32 v{T2}, v{D}, v{B}
v_mul_f32 v{T1}, 0x3fb8aa3b, v{T1}
v_mul_f32 v{T2}, 0.15915494, v{T2}
v_exp_f32 v{T1}, v{T1}
v_fract_f32 v{T2}, v{T2}
v_cos_f32 v{lr}, v{T2}
v_sin_f32 v{li}, v{T2}
s_nop 0
v_mul_f32 v{lr}, v{lr}, v{T1}
v_mul_f32 v{li}, v{li}, v{T1}""")
    if want_coef:
        a(f"""v_add_f32 v{T1}, -1.0, v{lr}
v_mul_f32 v{T2}, v{A}, v{A}
v_fmac_f32 v{T2}, v{B}, v{B}
v_rcp_f32 v{T2}, v{T2}
v_mul_f32 v{cr}, v{T1}, v{A}
v_fmac_f32 v{cr}, v{li}, v{B}
v_mul_f32 v{ci}, v{li}, v{A}
v_fma_f32 v{ci}, -v{T1}, v{B}, v{ci}
v_mul_f32 v{cr}, v{cr}, v{T2}
v_mul_f32 v{ci}, v{ci}, v{T2}""")

def csq(a, dr, di, sr_, si, tmp):
    a(f"v_mul_f32 v{tmp}, v{si}, v{si}")
    a(f"v_fma_f32 v{dr}, v{sr_}, v{sr_}, -v{tmp}")
    a(f"v_mul_f32 v{di}, v{sr_}, v{si}")
    a(f"v_add_f32 v{di}, v{di}, v{di}")

def cmul(a, dr, di, ar, ai, br, bi, tmp):
    a(f"v_mul_f32 v{tmp}, v{ai}, v{bi}")
    a(f"v_fma_f32 v{tmp}, v{ar}, v{br}, -v{tmp}")
    a(f"v_mul_f32 v{tmp+1}, v{ai}, v{br}")
    a(f"v_fma_f32 v{di}, v{ar}, v{bi}, v{tmp+1}")
    a(f"v_mov_b32 v{dr}, v{tmp}")

def cfma(a, dr, di, lr, li, hr, hi, cr, ci, tr):
    a(f"v_fma_f32 v{tr}, -v{li}, v{hi}, v{cr}")
    a(f"v_fma_f32 v{di}, v{lr}, v{hi}, v{ci}")
    a(f"v_fma_f32 v{di}, v{li}, v{hr}, v{di}")
    a(f"v_fma_f32 v{dr}, v{lr}, v{hr}, v{tr}")

def gemm_loop(a, nch, nslots, ndma, dma, setaddr, reads, nreads, mfmas):
    pre=min(nslots-1,nch)
    for c in range(pre): dma(c)
    for c in range(nch):
        issued=min(c+pre,nch)
        a(f"s_waitcnt vmcnt({(issued-(c+1))*ndma})")
        a("s_barrier")
        if c+pre<nch: dma(c+pre)
        setaddr(c%nslots)
        reads(0,0)
        for ks in range(4):
            if ks<3:
                reads(ks+1,(ks+1)&1)
                a(f"s_waitcnt lgkmcnt({nreads})")
            else:
                a("s_waitcnt lgkmcnt(0)")
            mfmas(ks,ks&1,c)

def kdesc(name, vgpr, sgpr=96):
    acc=(vgpr+3)//4*4
    return f""".amdhsa_kernel {name}
  .amdhsa_next_free_vgpr {vgpr}
  .amdhsa_next_free_sgpr {sgpr}
  .amdhsa_accum_offset {acc}
  .amdhsa_group_segment_fixed_size 0
  .amdhsa_kernarg_size 120
  .amdhsa_user_sgpr_count 2
  .amdhsa_user_sgpr_kernarg_segment_ptr 1
  .amdhsa_system_sgpr_workgroup_id_x 1
.end_amdhsa_kernel
"""
def khead(name):
    return f""".globl {name}
.p2align 8
.type {name},@function
{name}:
"""
```

```python
from common import *
QSCALE=0.18898223650461362*1.4426950408889634
import struct
def f2u(f): return struct.unpack('<I',struct.pack('<f',f))[0]

def prologue(a, ngrid, name):
    a(f"""s_cmp_ge_u32 s2, {ngrid}
s_cbranch_scc1 {name[:2]}_exit
s_load_dwordx16 s[16:31], s[0:1], 0
s_load_dwordx8 s[32:39], s[0:1], 64
s_load_dwordx2 s[40:41], s[0:1], 96
s_load_dwordx2 s[42:43], s[0:1], 112
v_lshrrev_b32 v1, 6, v0
v_and_b32 v0, 63, v0
s_nop 0
v_readfirstlane_b32 s3, v1
""")

def k1():
    a=Asm(); N="k1_kernel"
    prologue(a,240,N)
    a("""s_and_b32 s4, s2, 7
s_lshr_b32 s5, s2, 3
s_and_b32 s6, s5, 1
s_lshl_b32 s8, s4, 1
s_add_u32 s6, s6, s8
s_lshr_b32 s7, s5, 1
s_and_b32 s9, s3, 3
s_lshr_b32 s10, s3, 2
v_and_b32 v1, 31, v0
v_lshrrev_b32 v2, 5, v0
v_lshrrev_b32 v3, 3, v0
v_and_b32 v4, 7, v0
v_lshrrev_b32 v5, 4, v0
""")
    a("""s_lshl_b32 s11, s9, 5
v_add_u32 v6, s11, v1
v_lshrrev_b32 v7, 1, v1
v_and_b32 v7, 7, v7
v_xor_b32 v7, v7, v2
v_lshlrev_b32 v7, 4, v7
v_lshl_add_u32 v8, v6, 7, v7
v_xor_b32 v9, 32, v8
v_xor_b32 v10, 64, v8
v_xor_b32 v11, 0x60, v8
""")
    a("""v_xor_b32 v12, v4, v5
v_lshlrev_b32 v12, 4, v12
v_xor_b32 v13, 64, v12
s_waitcnt lgkmcnt(0)
s_cmp_ge_u32 s7, 8
s_cbranch_scc1 k1_u
""")
    srd(a,44,34,SZ_X); srd(a,48,36,SZ_WQKV); srd(a,56,42,3*SZ_QF)
    a("""s_lshl_b32 s11, s6, 7
s_lshl_b32 s12, s3, 4
s_add_u32 s11, s11, s12
v_add_u32 v6, s11, v3
v_mul_u32_u24 v6, 896, v6
v_add_u32 v14, v6, v12
v_add_u32 v15, v6, v13
v_add_u32 v15, 7168, v15
""")
    a("""s_lshl_b32 s11, s7, 1
s_add_u32 s11, s11, s10
s_mul_i32 s12, s11, 168
s_and_b32 s13, s12, 15
s_and_b32 s12, s12, 0xfffffff0
s_lshl_b32 s14, s9, 4
v_add_u32 v6, s14, v5
v_mul_u32_u24 v6, 2688, v6
v_and_b32 v7, 15, v0
v_lshlrev_b32 v17, 2, v5
v_xor_b32 v7, v7, v17
v_cmp_gt_u32 vcc, 11, v7
v_lshlrev_b32 v7, 4, v7
v_add3_u32 v16, v6, v7, s12
s_mov_b64 s[72:73], vcc
""")
    a("""v_and_b32 v6, 15, v0
v_lshrrev_b32 v7, 2, v6
v_and_b32 v17, 3, v0
v_lshlrev_b32 v17, 3, v17
v_and_b32 v24, 1, v5
v_lshl_add_u32 v17, v24, 5, v17
v_add_u32 v17, s13, v17
v_lshrrev_b32 v24, 1, v5
v_lshl_add_u32 v24, v24, 3, v7
v_lshlrev_b32 v24, 8, v24
s_lshl_b32 s14, s10, 14
s_add_u32 s14, s14, 49152
v_add_u32 v24, s14, v24
v_lshlrev_b32 v7, 6, v7
""")
    for t in range(3):
        a(f"""v_add_u32 v6, {56*t}, v17
v_xor_b32 v6, v6, v7
v_add_u32 v{18+t}, v6, v24
v_add_u32 v{21+t}, 0x10000, v{18+t}""")
    a("""s_lshl_b32 s74, s3, 11
s_lshl_b32 s75, s9, 12
s_add_u32 s75, s75, s14
""")
    ACC=32; AF=80; WF=88
    def dma(c):
        sl=c%3
        a(f"s_mov_b32 s76, {c*128}")
        for q in range(2):
            a(f"s_add_u32 m0, s74, {sl*16384+q*1024}")
            a("s_nop 0")
            a(f"buffer_load_dwordx4 v{14+q}, s[44:47], s76 offen lds")
        a("s_mov_b64 exec, s[72:73]")
        for q in range(4):
            a(f"s_add_u32 m0, s75, {sl*32768+q*1024}")
            a(f"s_mov_b32 s76, {(c*64+4*q)*2688}")
            a(f"buffer_load_dwordx4 v16, s[48:51], s76 offen lds")
        a("s_mov_b64 exec, -1")
    cur={}
    def setaddr(sl): cur['sl']=sl
    def reads(ks,b):
        sl=cur['sl']
        a(f"ds_read_b128 {vr(AF+4*b,4)}, v{8+ks} offset:{sl*16384}")
        for t in range(3):
            base=(21 if sl==2 else 18)+t
            o=(0 if sl==2 else sl*32768)+ks*4096
            a(f"ds_read_b64_tr_b16 {vr(WF+12*b+4*t,2)}, v{base} offset:{o}")
            a(f"ds_read_b64_tr_b16 {vr(WF+12*b+4*t+2,2)}, v{base} offset:{o+1024}")
    def mk_mfmas(isv):
        def m(ks,b,c):
            for t in range(3):
                C = "0" if (c==0 and ks==0) else vr(ACC+16*t,16)
                x=vr(AF+4*b,4); w=vr(WF+12*b+4*t,4)
                A_,B_=(x,w) if isv[t] else (w,x)
                a(f"v_mfma_f32_32x32x16_bf16 {vr(ACC+16*t,16)}, {A_}, {B_}, {C}")
        return m
    a("""s_mul_i32 s77, s7, 6
s_mul_i32 s78, s10, 3
s_add_u32 s77, s77, s78
s_cmp_ge_u32 s77, 32
s_cbranch_scc1 k1_vvv
s_cmp_eq_u32 s77, 30
s_cbranch_scc1 k1_nnv
""")
    for nm,isv in (("nnn",(0,0,0)),("nnv",(0,0,1)),("vvv",(1,1,1))):
        a.label("k1_"+nm)
        gemm_loop(a,7,3,6,dma,setaddr,reads,7,mk_mfmas(isv))
        a(f"s_branch k1_epi")
    a.label("k1_epi")
    a("s_nop 15")
    a(f"""s_lshl_b32 s79, s6, 2
s_add_u32 s79, s79, s9
v_lshlrev_b32 v6, 4, v0
v_cmp_le_u32 vcc, 32, v0
s_mov_b64 s[80:81], vcc
v_cmp_eq_u32 vcc, 28, v1
s_mov_b64 s[82:83], vcc
v_cmp_lt_u32 vcc, 28, v1
s_mov_b64 s[84:85], vcc
""")
    for t in range(3):
        A=ACC+16*t
        a(f"""s_add_u32 s86, s77, {t}
s_lshl_b32 s87, s86, 6
s_add_u32 s87, s87, s79
s_lshl_b32 s87, s87, 11
s_cmp_ge_u32 s86, 16
s_cbranch_scc1 k1_e{t}n""")
        for r in range(16): a(f"v_mul_f32 v{A+r}, {hex(f2u(QSCALE))}, v{A+r}")
        a.label(f"k1_e{t}n")
        for r in range(8): a(f"v_cvt_pk_bf16_f32 v{A+r}, v{A+2*r}, v{A+2*r+1}")
        a(f"""s_cmp_ge_u32 s86, 32
s_cbranch_scc1 k1_e{t}v
s_cmp_ge_u32 s86, 16
s_cselect_b32 s88, 0x3f80, 0
v_mov_b32 v7, s88
v_cndmask_b32 v{A+6}, v{A+6}, v7, s[80:81]
v_cndmask_b32 v{A+7}, v{A+7}, 0, s[80:81]
s_branch k1_e{t}s""")
        a.label(f"k1_e{t}v")
        a("v_mov_b32 v7, 0x3f803f80")
        for r in range(8):
            a(f"v_cndmask_b32 v{A+r}, v{A+r}, v7, s[82:83]")
            a(f"v_cndmask_b32 v{A+r}, v{A+r}, 0, s[84:85]")
        a.label(f"k1_e{t}s")
        a(f"""buffer_store_dwordx4 {vr(A,4)}, v6, s[56:59], s87 offen
buffer_store_dwordx4 {vr(A+4,4)}, v6, s[56:59], s87 offen offset:1024""")
    a("s_endpgm")
    a.label("k1_u")
    srd(a,44,16,SZ_X); srd(a,48,22,SZ_W); srd(a,52,24,SZ_W)
    srd(a,56,42,SZ_HL,WS_HL); srd(a,60,18,SZ_VEC); srd(a,64,20,SZ_VEC); srd(a,68,30,SZ_VEC)
    T=112
    a(f"""s_sub_u32 s7, s7, 8
s_lshl_b32 s11, s7, 6
s_lshl_b32 s12, s10, 5
s_add_u32 s12, s12, s11
v_add_u32 v25, s12, v1
v_lshlrev_b32 v26, 1, v25
buffer_load_ushort v{T+4}, v26, s[60:63], 0 offen
buffer_load_ushort v{T+5}, v26, s[64:67], 0 offen
buffer_load_ushort v{T+6}, v26, s[68:71], 0 offen
""")
    a("""s_lshl_b32 s13, s6, 7
s_lshr_b32 s14, s3, 1
s_lshl_b32 s14, s14, 5
s_add_u32 s13, s13, s14
s_and_b32 s14, s3, 1
s_lshl_b32 s14, s14, 3
s_add_u32 s13, s13, s14
v_and_b32 v6, 3, v3
v_lshl_add_u32 v6, v2, 4, v6
v_add_u32 v6, s13, v6
v_mul_u32_u24 v6, 896, v6
v_add_u32 v14, v6, v12
v_add_u32 v15, v6, v13
v_add_u32 v15, 3584, v15
""")
    a("""s_lshl_b32 s13, s3, 3
s_add_u32 s13, s13, s11
v_add_u32 v6, s13, v3
v_mul_u32_u24 v6, 896, v6
s_and_b32 s14, s3, 1
s_lshl_b32 s14, s14, 6
v_xor_b32 v7, s14, v12
v_add_u32 v16, v6, v7
s_lshl_b32 s74, s3, 11
s_lshl_b32 s75, s3, 10
s_add_u32 s75, s75, 49152
""")
    a("""s_lshl_b32 s13, s10, 12
s_add_u32 s13, s13, 49152
v_lshrrev_b32 v7, 1, v1
v_and_b32 v7, 7, v7
v_xor_b32 v7, v7, v2
v_lshlrev_b32 v7, 4, v7
v_lshl_add_u32 v18, v1, 7, v7
v_add_u32 v18, s13, v18
v_xor_b32 v19, 32, v18
v_xor_b32 v20, 64, v18
v_xor_b32 v21, 0x60, v18
""")
    def dmau(c):
        sl=c%3
        a(f"s_mov_b32 s76, {c*128}")
        for q in range(2):
            a(f"s_add_u32 m0, s74, {sl*16384+q*1024}")
            a("s_nop 0")
            a(f"buffer_load_dwordx4 v{14+q}, s[44:47], s76 offen lds")
        for q in range(2):
            a(f"s_add_u32 m0, s75, {sl*16384+q*8192}")
            a("s_nop 0")
            a(f"buffer_load_dwordx4 v16, {sr(48+4*q,4)}, s76 offen lds")
    def readsu(ks,b):
        sl=cur['sl']
        a(f"ds_read_b128 {vr(AF+4*b,4)}, v{8+ks} offset:{sl*16384}")
        for q in range(2):
            a(f"ds_read_b128 {vr(WF+8*b+4*q,4)}, v{18+ks} offset:{sl*16384+q*8192}")
    def mfmau(ks,b,c):
        for q in range(2):
            C = "0" if (c==0 and ks==0) else vr(ACC+16*q,16)
            a(f"v_mfma_f32_32x32x16_bf16 {vr(ACC+16*q,16)}, {vr(AF+4*b,4)}, {vr(WF+8*b+4*q,4)}, {C}")
    gemm_loop(a,7,3,4,dmau,setaddr,readsu,3,mfmau)
    ssm_consts_math(a,T)
    lr,li,cr,ci=T,T+1,T+2,T+3
    a("s_nop 7")
    R=ACC; I=ACC+16
    a(f"""s_lshl_b32 s13, s6, 7
s_lshl_b32 s14, s9, 5
s_add_u32 s13, s13, s14
v_lshl_add_u32 v6, v2, 4, s13
v_mul_u32_u24 v6, 448, v6
v_add_u32 v6, v6, v25
v_lshlrev_b32 v6, 3, v6
""")
    for r in range(16):
        if r>0: cfma(a,R+r,I+r,lr,li,R+r-1,I+r-1,R+r,I+r,T+4)
        P=80+2*r
        a(f"v_mul_f32 v{T+5}, v{ci}, v{I+r}")
        a(f"v_fma_f32 v{P}, v{cr}, v{R+r}, -v{T+5}")
        a(f"v_mul_f32 v{T+5}, v{ci}, v{R+r}")
        a(f"v_fma_f32 v{P+1}, v{cr}, v{I+r}, v{T+5}")
        so=r*3584
        if so<=4095: a(f"buffer_store_dwordx2 {vr(P,2)}, v6, s[56:59], 0 offen offset:{so}")
        else:
            a(f"s_mov_b32 s76, {so}")
            a(f"buffer_store_dwordx2 {vr(P,2)}, v6, s[56:59], s76 offen")
    L=T+4
    csq(a,L,L+1,lr,li,T+8); csq(a,L+2,L+3,L,L+1,T+8); csq(a,L,L+1,L+2,L+3,T+8); csq(a,L+2,L+3,L,L+1,T+8)
    a(f"""s_barrier
s_lshl_b32 s13, s9, 7
s_lshl_b32 s14, s10, 5
s_add_u32 s13, s13, s14
v_lshl_add_u32 v7, v2, 6, s13
v_add_u32 v7, v7, v1
v_lshlrev_b32 v7, 3, v7
ds_write_b64 v7, {vr(80+30,2)}
v_add_u32 v7, s14, v1
v_lshlrev_b32 v7, 3, v7
ds_write_b64 v7, {vr(L+2,2)} offset:4096
s_waitcnt lgkmcnt(0)
s_barrier
s_cmp_lg_u32 s3, 0
s_cbranch_scc1 k1_exit
""")
    srd(a,60,42,SZ_SR,WS_SR); srd(a,64,42,SZ_EC,WS_EC)
    a(f"v_lshlrev_b32 v7, 3, v0")
    for r in range(8): a(f"ds_read_b64 {vr(32+2*r,2)}, v7 offset:{r*512}")
    a(f"""ds_read_b64 v[48:49], v7 offset:4096
s_mul_i32 s13, s6, 8*3584
s_lshl_b32 s14, s7, 9
s_add_u32 s13, s13, s14
s_mul_i32 s15, s6, 3584
s_add_u32 s15, s15, s14
v_mov_b32 v50, 0
v_mov_b32 v51, 0
s_waitcnt lgkmcnt(0)
""")
    for r in range(8):
        S=50+2*r
        a(f"buffer_store_dwordx2 {vr(S,2)}, v7, s[60:63], s13 offen")
        a(f"s_add_u32 s13, s13, 3584")
        cfma(a,S+2,S+3,48,49,S,S+1,32+2*r,33+2*r,70)
    a(f"buffer_store_dwordx2 {vr(66,2)}, v7, s[64:67], s15 offen")
    a.label("k1_exit")
    a("s_endpgm")
    return khead(N)+a.text(), kdesc(N,122)
```

```python
from common import *
from k1 import prologue
def pkcfma(a,d,l,h,c):
    a(f"v_pk_fma_f32 {vr(d,2)}, {vr(l,2)}, {vr(h,2)}, {vr(c,2)} op_sel:[0,0,0] op_sel_hi:[0,1,1]")
    a(f"v_pk_fma_f32 {vr(d,2)}, {vr(l,2)}, {vr(h,2)}, {vr(d,2)} op_sel:[1,1,0] op_sel_hi:[1,0,1] neg_lo:[1,0,0]")
def pkcmul(a,d,l,h):
    a(f"v_pk_mul_f32 {vr(d,2)}, {vr(l,2)}, {vr(h,2)} op_sel:[0,0] op_sel_hi:[0,1]")
    a(f"v_pk_fma_f32 {vr(d,2)}, {vr(l,2)}, {vr(h,2)}, {vr(d,2)} op_sel:[1,1,0] op_sel_hi:[1,0,1] neg_lo:[1,0,0]")

def k2():
    a=Asm(); N="k2_kernel"
    prologue(a,256,N)
    KV=16; O=80; Q=144; S=176; PK=208
    a("""s_and_b32 s4, s2, 7
s_lshl_b32 s4, s4, 1
s_lshr_b32 s5, s2, 3
s_and_b32 s5, s5, 1
s_add_u32 s4, s4, s5
s_lshr_b32 s5, s2, 4
v_and_b32 v1, 31, v0
v_lshrrev_b32 v2, 5, v0
v_lshlrev_b32 v3, 4, v0
s_waitcnt lgkmcnt(0)
""")
    srd(a,44,42,SZ_QF,WS_QF); srd(a,48,42,2*SZ_QF,WS_KF); srd(a,56,42,SZ_OB,WS_OB)
    T=176
    a("""s_cmp_ge_u32 s3, 4
s_cbranch_scc1 k2_noside1""")
    srd(a,60,18,SZ_VEC); srd(a,64,20,SZ_VEC); srd(a,68,30,SZ_VEC)
    srd(a,72,42,SZ_HL,WS_HL); srd(a,76,42,SZ_SR,WS_SR); srd(a,80,42,SZ_EC,WS_EC); srd(a,84,42,SZ_HB,WS_HB)
    a(f"""s_lshr_b32 s6, s2, 1
s_and_b32 s7, s2, 1
s_mul_i32 s7, s7, 224
s_lshl_b32 s8, s3, 6
v_add_u32 v8, s8, v0
v_cmp_gt_u32 vcc, 224, v8
v_add_u32 v8, s7, v8
v_mov_b32 v9, 0x3fffffff
v_cndmask_b32 v8, v9, v8, vcc
v_lshlrev_b32 v9, 1, v8
v_lshlrev_b32 v10, 3, v8
v_cndmask_b32 v9, -1, v9, vcc
v_cndmask_b32 v10, -1, v10, vcc
v_and_b32 v9, 0x7ffffffe, v9
v_and_b32 v10, 0x7ffffff8, v10
buffer_load_ushort v{T+4}, v9, s[60:63], 0 offen
buffer_load_ushort v{T+5}, v9, s[64:67], 0 offen
buffer_load_ushort v{T+6}, v9, s[68:71], 0 offen
s_mul_i32 s8, s6, 3584
buffer_load_dwordx2 v[142:143], v10, s[76:79], s8 offen
s_lshr_b32 s9, s6, 3
s_mov_b32 s10, 0
""")
    for i in range(15):
        a(f"""s_cmp_le_u32 s9, {i}
s_cbranch_scc1 k2_ecdone
buffer_load_dwordx2 {vr(112+2*i,2)}, v10, s[80:83], s10 offen
s_add_u32 s10, s10, 3584""")
    a.label("k2_ecdone")
    a("s_mul_i32 s8, s6, 16*3584")
    for r in range(16):
        a(f"buffer_load_dwordx2 {vr(80+2*r,2)}, v10, s[72:75], s8 offen")
        a(f"s_add_u32 s8, s8, 3584")
    a.label("k2_noside1")
    a("""s_lshl_b32 s11, s4, 6
s_lshl_b32 s12, s5, 2
s_add_u32 s12, s12, s11
s_lshl_b32 s12, s12, 11""")
    for qt in range(4):
        a(f"buffer_load_dwordx4 {vr(Q+8*qt,4)}, v3, s[44:47], s12 offen")
        a(f"buffer_load_dwordx4 {vr(Q+8*qt+4,4)}, v3, s[44:47], s12 offen offset:1024")
        a(f"s_add_u32 s12, s12, 2048")
    a("""s_lshl_b32 s13, s3, 3
s_add_u32 s13, s13, s11
s_lshl_b32 s13, s13, 11
s_lshl_b32 s14, s11, 11""")
    def kvload(j,soff):
        b=KV+16*j
        a(f"s_add_u32 s15, s{soff}, 0x200000")
        a(f"buffer_load_dwordx4 {vr(b,4)}, v3, s[48:51], s{soff} offen")
        a(f"buffer_load_dwordx4 {vr(b+4,4)}, v3, s[48:51], s{soff} offen offset:1024")
        a(f"buffer_load_dwordx4 {vr(b+8,4)}, v3, s[48:51], s15 offen")
        a(f"buffer_load_dwordx4 {vr(b+12,4)}, v3, s[48:51], s15 offen offset:1024")
        a(f"s_add_u32 s{soff}, s{soff}, 2048")
    a(f"""buffer_load_dwordx4 {vr(PK,4)}, v3, s[48:51], s14 offen
buffer_load_dwordx4 {vr(PK+4,4)}, v3, s[48:51], s14 offen offset:1024
s_mov_b32 s90, s13""")
    for j in range(4): kvload(j,90)
    a("""s_cmp_ge_u32 s3, 4
s_cbranch_scc1 k2_noside2
s_waitcnt vmcnt(26)""")
    ssm_consts_math(a,T,want_coef=False)
    P=[T]+[T+10+2*i for i in range(7)]
    for i in range(7): pkcmul(a,P[i+1],P[i],P[i])
    H=T+24; H2=T+26
    a(f"v_mov_b32 v{H}, 0\nv_mov_b32 v{H+1}, 0")
    for i in range(15):
        a(f"""s_cmp_le_u32 s9, {i}
s_cbranch_scc1 k2_hdone""")
        pkcfma(a,112+2*i,P[7],H,112+2*i)
        a(f"v_mov_b32 v{H}, v{112+2*i}\nv_mov_b32 v{H+1}, v{113+2*i}")
    a.label("k2_hdone")
    for bit,pw in ((1,4),(2,5),(4,6)):
        a(f"""s_bitcmp0_b32 s6, {bit.bit_length()-1}
s_cbranch_scc1 k2_pw{bit}""")
        pkcmul(a,H2,P[pw],H)
        a(f"v_mov_b32 v{H}, v{H2}\nv_mov_b32 v{H+1}, v{H2+1}")
        a.label(f"k2_pw{bit}")
    a(f"v_pk_add_f32 {vr(H,2)}, {vr(H,2)}, v[142:143]")
    W=[H,H2]
    for r in range(16):
        src=W[r&1]; dst=W[(r+1)&1]
        pkcmul(a,dst,P[0],src)
        a(f"v_pk_add_f32 {vr(80+2*r,2)}, {vr(80+2*r,2)}, {vr(dst,2)}")
        a(f"v_cvt_pk_bf16_f32 v{80+2*r}, v{80+2*r}, -v{81+2*r}")
    a("s_mul_i32 s8, s6, 16*1792\ns_add_u32 s10, s8, 896\ns_waitcnt vmcnt(0)")
    for r in range(16):
        a(f"buffer_store_short v{80+2*r}, v9, s[84:87], s8 offen")
        a(f"buffer_store_short_d16_hi v{80+2*r}, v9, s[84:87], s10 offen")
        a(f"s_add_u32 s8, s8, 1792\ns_add_u32 s10, s10, 1792")
    a("s_branch k2_side_done")
    a.label("k2_noside2")
    a("s_waitcnt vmcnt(0)")
    a.label("k2_side_done")
    a("""v_cmp_le_u32 s[88:89], 32, v0
s_mov_b32 s91, 1
s_nop 1""")
    a.label("k2_restart")
    for qt in range(4):
        a(f"v_cndmask_b32 v{Q+8*qt+6}, v{Q+8*qt+6}, 0, s[88:89]")
        a(f"v_mov_b32 v{4+qt}, 0xff800000")
    a("s_mov_b32 s92, s14\ns_mov_b32 s93, s91")
    a.label("k2_maxloop")
    for qt in range(4):
        sb=S+16*(qt&1)
        a(f"v_mfma_f32_32x32x16_bf16 {vr(sb,16)}, {vr(PK,4)}, {vr(Q+8*qt,4)}, 0")
        a(f"v_mfma_f32_32x32x16_bf16 {vr(sb,16)}, {vr(PK+4,4)}, {vr(Q+8*qt+4,4)}, {vr(sb,16)}")
        if qt&1:
            a("s_nop 15")
            for q2 in (qt-1,qt):
                s2=S+16*(q2&1)
                for r in range(0,16,2): a(f"v_max3_f32 v{4+q2}, v{s2+r}, v{s2+r+1}, v{4+q2}")
            a("s_nop 7")
    a(f"""s_sub_u32 s93, s93, 1
s_cmp_eq_u32 s93, 0
s_cbranch_scc1 k2_maxdone
s_add_u32 s92, s92, 2048
buffer_load_dwordx4 {vr(PK,4)}, v3, s[48:51], s92 offen
buffer_load_dwordx4 {vr(PK+4,4)}, v3, s[48:51], s92 offen offset:1024
s_waitcnt vmcnt(0)
s_branch k2_maxloop""")
    a.label("k2_maxdone")
    for qt in range(4):
        m=4+qt
        a(f"""v_mov_b32 v8, v{m}
s_nop 1
v_permlane32_swap_b32 v8, v{m}
s_nop 1
v_max_f32 v{m}, v8, v{m}
v_add_u32 v8, 0xffff, v{m}
v_cmp_lt_f32 vcc, 0, v{m}
s_nop 1
v_cndmask_b32 v8, v{m}, v8, vcc
v_lshrrev_b32 v8, 16, v8
v_xor_b32 v8, 0x8000, v8
v_cndmask_b32 v{Q+8*qt+6}, v{Q+8*qt+6}, v8, s[88:89]""")
    steps=[(kt,qt) for kt in range(8) for qt in range(4)]
    def smf(i,part):
        kt,qt=steps[i]; sb=S+16*(i&1); kb=KV+16*(kt%4)
        C="0" if part==0 else vr(sb,16)
        a(f"v_mfma_f32_32x32x16_bf16 {vr(sb,16)}, {vr(kb+4*part,4)}, {vr(Q+8*qt+4*part,4)}, {C}")
    def omf(i,part):
        kt,qt=steps[i]; vb=KV+16*(kt%4)+8; ob=O+16*qt
        C="0" if (kt==0 and part==0) else vr(ob,16)
        a(f"v_mfma_f32_32x32x16_bf16 {vr(ob,16)}, {vr(vb+4*part,4)}, {vr(PK+8*(i&1)+4*part,4)}, {C}")
    a("s_nop 1")
    smf(0,0); smf(0,1); a("s_nop 15")
    n=len(steps)
    for i in range(n):
        kt,qt=steps[i]; sb=S+16*(i&1)
        nx=i+1<n
        if nx and steps[i+1][1]==0 and steps[i+1][0]>=4:
            k2=steps[i+1][0]
            issued=min(7,kt+3); a(f"s_waitcnt vmcnt({(issued-k2)*4})")
        def ex(r0):
            for r in range(r0,r0+4): a(f"v_exp_f32 v{sb+r}, v{sb+r}")
        if nx: smf(i+1,0)
        ex(0)
        if i>0: omf(i-1,0)
        ex(4)
        if nx: smf(i+1,1)
        ex(8)
        if i>0: omf(i-1,1)
        if qt==0 and kt>=1 and kt+3<8: kvload((kt+3)%4,90)
        ex(12)
        for r in range(8): a(f"v_cvt_pk_bf16_f32 v{PK+8*(i&1)+r}, v{sb+2*r}, v{sb+2*r+1}")
    a("s_nop 1"); omf(n-1,0); omf(n-1,1)
    a("s_nop 15")
    a(f"""s_lshl_b32 s8, s3, 14
v_add_u32 v8, s8, v3
s_barrier""")
    for qt in range(4):
        for g in range(4): a(f"ds_write_b128 v8, {vr(O+16*qt+4*g,4)} offset:{qt*4096+g*1024}")
    a(f"""s_lshr_b32 s8, s3, 1
s_lshl_b32 s9, s8, 12
s_and_b32 s10, s3, 1
s_lshl_b32 s12, s10, 11
s_add_u32 s12, s12, s9
v_add_u32 v8, s12, v3
v_lshlrev_b32 v9, 4, v1
s_add_u32 s9, s9, 3584
v_add_u32 v9, s9, v9
v_add_u32 v10, 0x10000, v8
v_add_u32 v11, 0x10000, v9
s_waitcnt lgkmcnt(0)
s_barrier""")
    R=16
    for w in range(8):
        b=(8,9) if w<4 else (10,11); o=(w&3)*16384
        a(f"ds_read_b128 {vr(R+9*w+0,4)}, v{b[0]} offset:{o}") if False else None
    for half in range(2):
        for w in range(4*half,4*half+4):
            b=(8,9) if w<4 else (10,11); o=(w&3)*16384
            a(f"ds_read_b128 {vr(R+8*w,4)}, v{b[0]} offset:{o}")
            a(f"ds_read_b128 {vr(R+8*w+4,4)}, v{b[0]} offset:{o+1024}")
            a(f"ds_read_b32 v{96+w}, v{b[1]} offset:{o}")
        if half==0: a("s_waitcnt lgkmcnt(0)")
    a("s_waitcnt lgkmcnt(0)")
    for w in range(1,8):
        for r in range(0,8,2): a(f"v_pk_add_f32 {vr(R+r,2)}, {vr(R+r,2)}, {vr(R+8*w+r,2)}")
        a(f"v_add_f32 v96, v96, v{96+w}")
    a(f"""v_cmp_ngt_f32 vcc, 0x4e800000, v96
s_nop 1
s_cmp_lg_u64 vcc, 0
s_cselect_b32 s94, 1, 0
v_mov_b32 v12, s94
v_mov_b32 v13, 0x20000
s_lshl_b32 s8, s3, 2
v_add_u32 v13, s8, v13
ds_write_b32 v13, v12
v_mov_b32 v13, 0x20000
s_waitcnt lgkmcnt(0)
s_barrier
ds_read_b128 v[104:107], v13
ds_read_b128 v[108:111], v13 offset:16
s_waitcnt lgkmcnt(0)
v_or3_b32 v104, v104, v105, v106
v_or3_b32 v104, v104, v107, v108
v_or3_b32 v104, v104, v109, v110
v_or_b32 v104, v104, v111
s_nop 0
v_readfirstlane_b32 s94, v104
s_cmp_eq_u32 s94, 0
s_cbranch_scc1 k2_fin
s_cmp_eq_u32 s91, 64
s_cbranch_scc1 k2_fin
s_mov_b32 s91, 64
s_mov_b32 s90, s13""")
    for j in range(4): kvload(j,90)
    a(f"""buffer_load_dwordx4 {vr(PK,4)}, v3, s[48:51], s14 offen
buffer_load_dwordx4 {vr(PK+4,4)}, v3, s[48:51], s14 offen offset:1024
s_waitcnt vmcnt(0)
s_branch k2_restart""")
    a.label("k2_fin")
    a("v_rcp_f32 v96, v96\ns_nop 0")
    for r in range(8): a(f"v_mul_f32 v{R+r}, v{R+r}, v96")
    for r in range(4): a(f"v_cvt_pk_bf16_f32 v{R+r}, v{R+2*r}, v{R+2*r+1}")
    a(f"""s_lshl_b32 s8, s5, 7
s_lshr_b32 s9, s3, 1
s_lshl_b32 s9, s9, 5
s_add_u32 s8, s8, s9
v_add_u32 v8, s8, v1
v_mul_u32_u24 v8, 896, v8
s_mul_i32 s9, s4, 56
s_and_b32 s10, s3, 1
s_lshl_b32 s12, s10, 5
s_add_u32 s9, s9, s12
v_lshl_add_u32 v8, v2, 3, v8
v_add_u32 v8, s9, v8
buffer_store_dwordx2 {vr(R,2)}, v8, s[56:59], 0 offen
s_cmp_eq_u32 s10, 0
s_cbranch_scc1 k2_st2
s_mov_b32 exec_hi, 0""")
    a.label("k2_st2")
    a(f"buffer_store_dwordx2 {vr(R+2,2)}, v8, s[56:59], 0 offen offset:16")
    a.label("k2_exit")
    a("s_endpgm")
    return khead(N)+a.text(), kdesc(N,224,sgpr=96)
```

```python
from common import *
from k1 import prologue
def k3():
    a=Asm(); N="k3_kernel"
    prologue(a,224,N)
    a("""s_and_b32 s4, s2, 7
s_lshr_b32 s5, s2, 3
s_and_b32 s6, s5, 1
s_lshl_b32 s8, s4, 1
s_add_u32 s6, s6, s8
s_lshr_b32 s7, s5, 1
s_and_b32 s9, s3, 3
s_lshr_b32 s10, s3, 2
v_and_b32 v1, 31, v0
v_lshrrev_b32 v2, 5, v0
v_lshrrev_b32 v3, 3, v0
v_and_b32 v4, 7, v0
v_lshrrev_b32 v5, 4, v0
s_lshl_b32 s11, s9, 5
v_add_u32 v6, s11, v1
v_lshrrev_b32 v7, 1, v1
v_and_b32 v7, 7, v7
v_xor_b32 v7, v7, v2
v_lshlrev_b32 v7, 4, v7
v_lshl_add_u32 v8, v6, 7, v7
v_xor_b32 v9, 32, v8
v_xor_b32 v10, 64, v8
v_xor_b32 v11, 0x60, v8
v_add_u32 v24, 0x10000, v8
v_add_u32 v25, 0x10000, v9
v_add_u32 v26, 0x10000, v10
v_add_u32 v27, 0x10000, v11
v_xor_b32 v12, v4, v5
v_lshlrev_b32 v12, 4, v12
v_xor_b32 v13, 64, v12
s_lshl_b32 s74, s3, 11
s_lshl_b32 s75, s3, 10
s_add_u32 s75, s75, 98304
s_lshl_b32 s11, s6, 7
s_lshl_b32 s12, s3, 4
s_add_u32 s11, s11, s12
v_add_u32 v22, s11, v3
s_waitcnt lgkmcnt(0)
""")
    srd(a,56,40,SZ_OUT)
    a("""s_lshl_b32 s11, s6, 7
s_lshl_b32 s12, s9, 5
s_add_u32 s11, s11, s12
v_add_u32 v23, s11, v1
s_cmp_ge_u32 s7, 7
s_cbranch_scc1 k3_o
""")
    ACC=32; AF=48; WF=56
    cur={}
    def setaddr(sl): cur['sl']=sl
    def aread(ks,b):
        sl=cur['sl']
        if sl<4: a(f"ds_read_b128 {vr(AF+4*b,4)}, v{8+ks} offset:{sl*16384}")
        else: a(f"ds_read_b128 {vr(AF+4*b,4)}, v{24+ks} offset:{(sl-4)*16384}")
    def mf(ks,b,c):
        C="0" if (c==0 and ks==0) else vr(ACC,16)
        a(f"v_mfma_f32_32x32x16_bf16 {vr(ACC,16)}, {vr(WF+4*b,4)}, {vr(AF+4*b,4)}, {C}")
    srd(a,44,42,SZ_HB,WS_HB); srd(a,48,26,SZ_W); srd(a,52,28,SZ_W); srd(a,60,16,SZ_X); srd(a,64,32,SZ_VEC)
    a("""v_mul_u32_u24 v6, 1792, v22
v_add_u32 v14, v6, v12
v_add_u32 v15, v6, v13
v_add_u32 v15, 14336, v15
s_lshl_b32 s11, s7, 6
s_lshl_b32 s13, s3, 3
s_add_u32 s13, s13, s11
v_add_u32 v6, s13, v3
v_mul_u32_u24 v6, 896, v6
s_and_b32 s14, s3, 1
s_lshl_b32 s14, s14, 6
v_xor_b32 v7, s14, v12
v_add_u32 v16, v6, v7
s_lshl_b32 s13, s10, 12
s_add_u32 s13, s13, 98304
v_lshrrev_b32 v7, 1, v1
v_and_b32 v7, 7, v7
v_xor_b32 v7, v7, v2
v_lshlrev_b32 v7, 4, v7
v_lshl_add_u32 v18, v1, 7, v7
v_add_u32 v18, s13, v18
v_xor_b32 v19, 32, v18
v_xor_b32 v20, 64, v18
v_xor_b32 v21, 0x60, v18
""")
    a("""s_lshl_b32 s12, s10, 5
s_add_u32 s12, s12, s11
s_lshl_b32 s15, s12, 1
v_mul_u32_u24 v6, 896, v23
v_lshl_add_u32 v6, v2, 3, v6
v_lshlrev_b32 v7, 3, v2
""")
    for g in range(4):
        a(f"buffer_load_dwordx2 {vr(64+2*g,2)}, v6, s[60:63], s15 offen offset:{16*g}")
        a(f"buffer_load_dwordx2 {vr(72+2*g,2)}, v7, s[64:67], s15 offen offset:{16*g}")
    def dmay(c):
        sl=c%6
        a(f"s_mov_b32 s76, {c*128}")
        for q in range(2):
            a(f"s_add_u32 m0, s74, {sl*16384+q*1024}")
            a("s_nop 0")
            a(f"buffer_load_dwordx4 v{14+q}, s[44:47], s76 offen lds")
        a(f"s_add_u32 m0, s75, {sl*8192}")
        a(f"s_mov_b32 s76, {(c%7)*128}")
        a(f"buffer_load_dwordx4 v16, {sr(48+4*(c//7),4)}, s76 offen lds")
    def readsy(ks,b):
        aread(ks,b)
        a(f"ds_read_b128 {vr(WF+4*b,4)}, v{18+ks} offset:{cur['sl']*8192}")
    gemm_loop(a,14,6,3,dmay,setaddr,readsy,2,mf)
    for g in range(4):
        for i in range(4):
            X=64+2*g+(i>>1); Dd=72+2*g+(i>>1); t=80+4*g+i
            if i&1:
                a(f"v_and_b32 v{t}, 0xffff0000, v{X}\nv_and_b32 v17, 0xffff0000, v{Dd}")
            else:
                a(f"v_lshlrev_b32 v{t}, 16, v{X}\nv_lshlrev_b32 v17, 16, v{Dd}")
            a(f"v_mul_f32 v{t}, v{t}, v17")
        for i in (0,2):
            t=80+4*g+i
            a(f"v_cvt_pk_bf16_f32 v17, v{t}, v{t+1}")
            a(f"v_lshlrev_b32 v{t}, 16, v17\nv_and_b32 v{t+1}, 0xffff0000, v17")
    for r in range(16): a(f"v_fma_f32 v{80+r}, v{ACC+r}, 2.0, v{80+r}")
    a("""s_lshl_b32 s15, s12, 2
v_mul_u32_u24 v6, 3584, v23
v_lshl_add_u32 v6, v2, 4, v6
""")
    for g in range(4): a(f"buffer_store_dwordx4 {vr(80+4*g,4)}, v6, s[56:59], s15 offen offset:{32*g}")
    a("s_endpgm")
    a.label("k3_o")
    srd(a,44,42,SZ_OB,WS_OB); srd(a,48,38,SZ_W)
    a("""s_sub_u32 s7, s7, 7
v_mul_u32_u24 v6, 896, v22
v_add_u32 v14, v6, v12
v_add_u32 v15, v6, v13
v_add_u32 v15, 7168, v15
s_lshl_b32 s13, s3, 3
v_add_u32 v6, s13, v3
v_mul_u32_u24 v6, 896, v6
v_and_b32 v7, 1, v5
v_lshlrev_b32 v7, 2, v7
v_xor_b32 v7, v7, v4
v_lshl_add_u32 v16, v7, 4, v6
s_lshl_b32 s13, s7, 7
v_add_u32 v16, s13, v16
v_and_b32 v6, 15, v0
v_lshrrev_b32 v7, 2, v6
v_and_b32 v17, 3, v0
v_lshlrev_b32 v17, 3, v17
v_and_b32 v6, 1, v5
v_lshl_add_u32 v17, v6, 5, v17
s_lshl_b32 s14, s10, 6
v_add_u32 v17, s14, v17
v_lshrrev_b32 v6, 1, v7
v_lshlrev_b32 v6, 6, v6
v_xor_b32 v17, v17, v6
v_lshrrev_b32 v6, 1, v5
v_lshl_add_u32 v6, v6, 3, v7
v_lshl_add_u32 v18, v6, 7, v17
v_add_u32 v18, 98304, v18
""")
    def dmao(c):
        sl=c%6
        a(f"s_mov_b32 s76, {c*128}")
        for q in range(2):
            a(f"s_add_u32 m0, s74, {sl*16384+q*1024}")
            a("s_nop 0")
            a(f"buffer_load_dwordx4 v{14+q}, s[44:47], s76 offen lds")
        a(f"s_add_u32 m0, s75, {sl*8192}")
        a(f"s_mov_b32 s76, {c*64*896}")
        a(f"buffer_load_dwordx4 v16, s[48:51], s76 offen lds")
    def readso(ks,b):
        aread(ks,b)
        o=cur['sl']*8192+ks*2048
        a(f"ds_read_b64_tr_b16 {vr(WF+4*b,2)}, v18 offset:{o}")
        a(f"ds_read_b64_tr_b16 {vr(WF+4*b+2,2)}, v18 offset:{o+512}")
    gemm_loop(a,7,6,3,dmao,setaddr,readso,3,mf)
    a("""s_nop 15
s_lshl_b32 s11, s7, 6
s_lshl_b32 s12, s10, 5
s_add_u32 s12, s12, s11
s_lshl_b32 s15, s12, 2
s_add_u32 s15, s15, 1792
v_mul_u32_u24 v6, 3584, v23
v_lshl_add_u32 v6, v2, 4, v6
""")
    for r in range(0,16,2):
        a(f"v_cvt_pk_bf16_f32 v17, v{ACC+r}, v{ACC+r+1}")
        a(f"v_lshlrev_b32 v{80+r}, 16, v17\nv_and_b32 v{81+r}, 0xffff0000, v17")
    for g in range(4): a(f"buffer_store_dwordx4 {vr(80+4*g,4)}, v6, s[56:59], s15 offen offset:{32*g}")
    a.label("k3_exit")
    a("s_endpgm")
    return khead(N)+a.text(), kdesc(N,96)
```

```python
import sys
sys.path.insert(0,'gen')
from k1 import k1
from k2 import k2
from k3 import k3
ref=open('concat_heads__ssm_conv_s5__mha_block__prompt.s.ref').read().split('\n')
hdr=[]
for ln in ref:
    if ln.startswith('; @launch'): break
    hdr.append(ln)
L=["; @launch kernel=k1_kernel grid=(240,1,1) block=(512,1,1) lds=147456",
   "; @launch kernel=k2_kernel grid=(256,1,1) block=(512,1,1) lds=141568",
   "; @launch kernel=k3_kernel grid=(224,1,1) block=(512,1,1) lds=147456"]
ks=[k1(),k2(),k3()]
out='\n'.join(hdr+L)+'\n.amdgcn_target "amdgcn-amd-amdhsa--gfx950"\n.text\n'
for c,d in ks: out+=c
out+='.section .rodata,"a"\n'
for c,d in ks: out+='.p2align 6\n'+d
dst=sys.argv[1] if len(sys.argv)>1 else 'concat_heads__ssm_conv_s5__mha_block__prompt.s'
open(dst,'w').write(out)
print(len(out))
```

```python
class Asm:
    def __init__(self): self.l=[]
    def __call__(self, s):
        for ln in s.strip('\n').split('\n'):
            self.l.append('    '+ln.strip() if not ln.strip().endswith(':') else ln.strip())
    def label(self, n): self.l.append(n+':')
    def text(self): return '\n'.join(self.l)+'\n'
def vr(a,n): return f"v[{a}:{a+n-1}]" if n>1 else f"v{a}"
def sr(a,n): return f"s[{a}:{a+n-1}]" if n>1 else f"s{a}"
KA=dict(A_x=0,Lre=8,Lim=16,B_re=24,B_im=32,C_re=40,C_im=48,logdt=56,Dskip=64,B_x=72,wqkv=80,wo=88,out=96,dbg=104,ws=112)
WS_QF=0x000000; WS_KF=0x200000; WS_VF=0x400000; WS_HL=0x600000; WS_SR=0xD00000; WS_EC=0xD80000
WS_HB=0xE00000; WS_OB=0x1200000
SZ_QF=0x200000; SZ_HL=2048*448*4; SZ_SR=128*448*8; SZ_EC=16*448*8; SZ_HB=2048*896*2; SZ_OB=2048*448*2
SZ_X=2048*448*2; SZ_W=448*448*2; SZ_WQKV=448*1344*2; SZ_VEC=448*2; SZ_OUT=2048*896*4

def srd(a, d, ptr, size, off=0):
    if off:
        a(f"s_add_u32 s{d}, s{ptr}, {hex(off)}")
        a(f"s_addc_u32 s{d+1}, s{ptr+1}, 0")
    else:
        a(f"s_mov_b32 s{d}, s{ptr}")
        a(f"s_mov_b32 s{d+1}, s{ptr+1}")
    a(f"s_mov_b32 s{d+2}, {hex(size)}")
    a(f"s_mov_b32 s{d+3}, 0x20000")

def ssm_consts(a, vP2, S_lre, S_lim, S_ldt, t, want_coef=True):
    lr,li,cr,ci,A,B,D,T1,T2,T3=[t+i for i in range(10)]
    a(f"""buffer_load_ushort v{A}, v{vP2}, {sr(S_lre,4)}, 0 offen
buffer_load_ushort v{B}, v{vP2}, {sr(S_lim,4)}, 0 offen
buffer_load_ushort v{D}, v{vP2}, {sr(S_ldt,4)}, 0 offen
s_waitcnt vmcnt(0)""")
    ssm_consts_math(a,t,want_coef)

def cvt_bf16_round(a, dst, src):
    a(f"v_cvt_pk_bf16_f32 v{dst}, v{src}, v{src}")
    a(f"v_lshlrev_b32 v{dst}, 16, v{dst}")

def ssm_consts_math(a,t,want_coef=True):
    lr,li,cr,ci,A,B,D,T1,T2,T3=[t+i for i in range(10)]
    a(f"""v_lshlrev_b32 v{A}, 16, v{A}
v_lshlrev_b32 v{B}, 16, v{B}
v_lshlrev_b32 v{D}, 16, v{D}
v_mul_f32 v{D}, 0x3fb8aa3b, v{D}
v_exp_f32 v{D}, v{D}
s_nop 0""")
    cvt_bf16_round(a,D,D)
    a(f"""v_mul_f32 v{T1}, v{D}, v{A}
v_mul_f32 v{T2}, v{D}, v{B}
v_mul_f32 v{T1}, 0x3fb8aa3b, v{T1}
v_mul_f32 v{T2}, 0.15915494, v{T2}
v_exp_f32 v{T1}, v{T1}
v_fract_f32 v{T2}, v{T2}
v_cos_f32 v{lr}, v{T2}
v_sin_f32 v{li}, v{T2}
s_nop 0
v_mul_f32 v{lr}, v{lr}, v{T1}
v_mul_f32 v{li}, v{li}, v{T1}""")
    if want_coef:
        a(f"""v_add_f32 v{T1}, -1.0, v{lr}
v_mul_f32 v{T2}, v{A}, v{A}
v_fmac_f32 v{T2}, v{B}, v{B}
v_rcp_f32 v{T2}, v{T2}
v_mul_f32 v{cr}, v{T1}, v{A}
v_fmac_f32 v{cr}, v{li}, v{B}
v_mul_f32 v{ci}, v{li}, v{A}
v_fma_f32 v{ci}, -v{T1}, v{B}, v{ci}
v_mul_f32 v{cr}, v{cr}, v{T2}
v_mul_f32 v{ci}, v{ci}, v{T2}""")

def csq(a, dr, di, sr_, si, tmp):
    a(f"v_mul_f32 v{tmp}, v{si}, v{si}")
    a(f"v_fma_f32 v{dr}, v{sr_}, v{sr_}, -v{tmp}")
    a(f"v_mul_f32 v{di}, v{sr_}, v{si}")
    a(f"v_add_f32 v{di}, v{di}, v{di}")

def cmul(a, dr, di, ar, ai, br, bi, tmp):
    a(f"v_mul_f32 v{tmp}, v{ai}, v{bi}")
    a(f"v_fma_f32 v{tmp}, v{ar}, v{br}, -v{tmp}")
    a(f"v_mul_f32 v{tmp+1}, v{ai}, v{br}")
    a(f"v_fma_f32 v{di}, v{ar}, v{bi}, v{tmp+1}")
    a(f"v_mov_b32 v{dr}, v{tmp}")

def cfma(a, dr, di, lr, li, hr, hi, cr, ci, tr):
    a(f"v_fma_f32 v{tr}, -v{li}, v{hi}, v{cr}")
    a(f"v_fma_f32 v{di}, v{lr}, v{hi}, v{ci}")
    a(f"v_fma_f32 v{di}, v{li}, v{hr}, v{di}")
    a(f"v_fma_f32 v{dr}, v{lr}, v{hr}, v{tr}")

def gemm_loop(a, nch, nslots, ndma, dma, setaddr, reads, nreads, mfmas):
    pre=min(nslots-1,nch)
    for c in range(pre): dma(c)
    for c in range(nch):
        issued=min(c+pre,nch)
        a(f"s_waitcnt vmcnt({(issued-(c+1))*ndma})")
        a("s_barrier")
        if c+pre<nch: dma(c+pre)
        setaddr(c%nslots)
        reads(0,0)
        for ks in range(4):
            if ks<3:
                reads(ks+1,(ks+1)&1)
                a(f"s_waitcnt lgkmcnt({nreads})")
            else:
                a("s_waitcnt lgkmcnt(0)")
            mfmas(ks,ks&1,c)

def kdesc(name, vgpr, sgpr=96):
    if DBG: vgpr=min(256,vgpr+8); sgpr=102
    if os.environ.get('KSKEW'): sgpr=102
    acc=(vgpr+3)//4*4
    return f""".amdhsa_kernel {name}
  .amdhsa_next_free_vgpr {vgpr}
  .amdhsa_next_free_sgpr {sgpr}
  .amdhsa_accum_offset {acc}
  .amdhsa_group_segment_fixed_size 0
  .amdhsa_kernarg_size 120
  .amdhsa_user_sgpr_count 2
  .amdhsa_user_sgpr_kernarg_segment_ptr 1
  .amdhsa_system_sgpr_workgroup_id_x 1
.end_amdhsa_kernel
"""
def khead(name):
    return f""".globl {name}
.p2align 8
.type {name},@function
{name}:
"""

import os
DBG=int(os.environ.get('KDBG','0'))
TSI="s_memrealtime" if os.environ.get("KRT") else "s_memtime"
DBGWG=int(os.environ.get('KDBGWG','0'))
def ts(a,i,tsv):
    if not DBG: return
    a(f"{TSI} s[98:99]\ns_waitcnt lgkmcnt(0)\nv_writelane_b32 v{tsv}, s98, {i}")
def tsflush(a,tsv,lab):
    if not DBG: return
    a(f"""s_cmp_lg_u32 s2, {DBGWG}
s_cbranch_scc1 {lab}
s_bitcmp1_b32 s3, 0
s_cbranch_scc1 {lab}
s_load_dwordx2 s[96:97], s[0:1], 104
s_mov_b64 exec, 0xffff
s_lshl_b32 s94, s3, 5
v_mbcnt_lo_u32_b32 v1, -1, 0
v_lshl_add_u32 v1, v1, 2, s94
s_waitcnt lgkmcnt(0)
s_mov_b32 s98, 256
s_mov_b32 s99, 0x20000
buffer_store_dword v{tsv}, v1, s[96:99], 0 offen
{lab}:""")

def gemm_loop2(a, nch, nslots, ndma, dma, reads, mfmas):
    pre=min(nslots-1,nch)
    for c in range(pre):
        for p in dma(c): a(p)
    for c in range(nch+1):
        if c<nch:
            issued=min(c+pre,nch)
            a(f"s_waitcnt vmcnt({(issued-(c+1))*ndma}) lgkmcnt(0)")
            a("s_barrier")
        else: a("s_waitcnt lgkmcnt(0)")
        pieces=dma(c+pre) if c+pre<nch else []
        for ks in range(4):
            if c<nch: reads(c,ks)
            if c>0: mfmas(c-1,ks)
            for i,p in enumerate(pieces):
                if i*4//len(pieces)==ks: a(p)

def wgstamp(a,k,which):
    if not os.environ.get('KSKEW'): return
    lab=f"sk{k}_{which}_{len(a.l)}"
    a(f"""s_cmp_lg_u32 s3, 0
s_cbranch_scc1 {lab}
s_memrealtime s[98:99]
s_lshl_b32 s94, s2, 3
s_add_u32 s94, s94, {0x1400000+k*0x1000+which*4}
s_waitcnt lgkmcnt(0)
v_mov_b32 v254, s98
v_mov_b32 v255, 0
s_mov_b32 s96, s42
s_mov_b32 s97, s43
s_mov_b32 s98, 0x2000000
s_mov_b32 s99, 0x20000
s_nop 4
buffer_store_dword v254, v255, s[96:99], s94 offen
{lab}:""")
```

```python
from common import *
QSCALE=0.18898223650461362*1.4426950408889634
import struct
def f2u(f): return struct.unpack('<I',struct.pack('<f',f))[0]

def prologue(a, ngrid, name):
    a(f"""s_cmp_ge_u32 s2, {ngrid}
s_cbranch_scc1 {name[:2]}_exit
s_load_dwordx16 s[16:31], s[0:1], 0
s_load_dwordx8 s[32:39], s[0:1], 64
s_load_dwordx2 s[40:41], s[0:1], 96
s_load_dwordx2 s[42:43], s[0:1], 112
v_lshrrev_b32 v1, 6, v0
v_and_b32 v0, 63, v0
s_nop 0
v_readfirstlane_b32 s3, v1
""")

TSV=228
def k1():
    a=Asm(); N="k1_kernel"
    prologue(a,240,N)
    if os.environ.get('KSKEW'): a('s_waitcnt lgkmcnt(0)')
    wgstamp(a,0,0)
    ts(a,0,TSV)
    a("""s_and_b32 s4, s2, 7
s_lshr_b32 s5, s2, 3
s_and_b32 s6, s5, 1
s_lshl_b32 s8, s4, 1
s_add_u32 s6, s6, s8
s_lshr_b32 s7, s5, 1
s_and_b32 s9, s3, 3
s_lshr_b32 s10, s3, 2
v_and_b32 v1, 31, v0
v_lshrrev_b32 v2, 5, v0
v_lshrrev_b32 v3, 3, v0
v_and_b32 v4, 7, v0
v_lshrrev_b32 v5, 4, v0
""")
    a("""s_lshl_b32 s11, s9, 5
v_add_u32 v6, s11, v1
v_lshrrev_b32 v7, 1, v1
v_and_b32 v7, 7, v7
v_xor_b32 v7, v7, v2
v_lshlrev_b32 v7, 4, v7
v_lshl_add_u32 v8, v6, 7, v7
v_xor_b32 v9, 32, v8
v_xor_b32 v10, 64, v8
v_xor_b32 v11, 0x60, v8
""")
    a("""v_xor_b32 v12, v4, v5
v_lshlrev_b32 v12, 4, v12
v_xor_b32 v13, 64, v12
s_waitcnt lgkmcnt(0)
s_cmp_ge_u32 s7, 8
s_cbranch_scc1 k1_u
""")
    srd(a,44,34,SZ_X); srd(a,48,36,SZ_WQKV); srd(a,56,42,3*SZ_QF)
    a("""s_lshl_b32 s11, s6, 7
s_lshl_b32 s12, s3, 4
s_add_u32 s11, s11, s12
v_add_u32 v6, s11, v3
v_mul_u32_u24 v6, 896, v6
v_add_u32 v14, v6, v12
v_add_u32 v15, v6, v13
v_add_u32 v15, 7168, v15
""")
    a("""s_lshl_b32 s11, s7, 1
s_add_u32 s11, s11, s10
s_mul_i32 s12, s11, 168
s_and_b32 s13, s12, 15
s_and_b32 s12, s12, 0xfffffff0
s_lshl_b32 s14, s9, 4
v_add_u32 v6, s14, v5
v_mul_u32_u24 v6, 2688, v6
v_and_b32 v7, 15, v0
v_lshlrev_b32 v17, 2, v5
v_xor_b32 v7, v7, v17
v_cmp_gt_u32 vcc, 11, v7
v_lshlrev_b32 v7, 4, v7
v_add3_u32 v16, v6, v7, s12
s_mov_b64 s[72:73], vcc
""")
    a("""v_and_b32 v6, 15, v0
v_lshrrev_b32 v7, 2, v6
v_and_b32 v17, 3, v0
v_lshlrev_b32 v17, 3, v17
v_and_b32 v24, 1, v5
v_lshl_add_u32 v17, v24, 5, v17
v_add_u32 v17, s13, v17
v_lshrrev_b32 v24, 1, v5
v_lshl_add_u32 v24, v24, 3, v7
v_lshlrev_b32 v24, 8, v24
s_lshl_b32 s14, s10, 14
s_add_u32 s14, s14, 49152
v_add_u32 v24, s14, v24
v_lshlrev_b32 v7, 6, v7
""")
    for t in range(3):
        a(f"""v_add_u32 v6, {56*t}, v17
v_xor_b32 v6, v6, v7
v_add_u32 v{18+t}, v6, v24
v_add_u32 v{21+t}, 0x10000, v{18+t}""")
    a("""s_lshl_b32 s74, s3, 11
s_lshl_b32 s75, s9, 12
s_add_u32 s75, s75, s14
""")
    ts(a,1,TSV)
    ACC=32; FB=80
    def dma(c):
        sl=c%3; L=[]
        for q in range(2):
            L.append(f"s_add_u32 m0, s74, {sl*16384+q*1024}\ns_mov_b32 s76, {c*128}\nbuffer_load_dwordx4 v{14+q}, s[44:47], s76 offen lds")
        for q in range(4):
            L.append(f"s_mov_b64 exec, s[72:73]\ns_add_u32 m0, s75, {sl*32768+q*1024}\ns_mov_b32 s76, {(c*64+4*q)*2688}\nbuffer_load_dwordx4 v16, s[48:51], s76 offen lds\ns_mov_b64 exec, -1")
        return [L[0],L[2],L[3],L[1],L[4],L[5]]
    def reads(c,ks):
        sl=c%3; F=FB+(c&1)*64+ks*16
        a(f"ds_read_b128 {vr(F,4)}, v{8+ks} offset:{sl*16384}")
        for t in range(3):
            base=(21 if sl==2 else 18)+t
            o=(0 if sl==2 else sl*32768)+ks*4096
            a(f"ds_read_b64_tr_b16 {vr(F+4+4*t,2)}, v{base} offset:{o}")
            a(f"ds_read_b64_tr_b16 {vr(F+4+4*t+2,2)}, v{base} offset:{o+1024}")
    def mk_mfmas(isv):
        def m(c,ks):
            F=FB+(c&1)*64+ks*16
            for t in range(3):
                C = "0" if (c==0 and ks==0) else vr(ACC+16*t,16)
                x=vr(F,4); w=vr(F+4+4*t,4)
                A_,B_=(x,w) if isv[t] else (w,x)
                a(f"v_mfma_f32_32x32x16_bf16 {vr(ACC+16*t,16)}, {A_}, {B_}, {C}")
        return m
    a("""s_mul_i32 s77, s7, 6
s_mul_i32 s78, s10, 3
s_add_u32 s77, s77, s78
s_cmp_ge_u32 s77, 32
s_cbranch_scc1 k1_vvv
s_cmp_eq_u32 s77, 30
s_cbranch_scc1 k1_nnv
""")
    for nm,isv in (("nnn",(0,0,0)),("nnv",(0,0,1)),("vvv",(1,1,1))):
        a.label("k1_"+nm)
        gemm_loop2(a,7,3,6,dma,reads,mk_mfmas(isv))
        a(f"s_branch k1_epi")
    a.label("k1_epi")
    ts(a,2,TSV)
    a("s_nop 15")
    a(f"""s_lshl_b32 s79, s6, 2
s_add_u32 s79, s79, s9
v_lshlrev_b32 v6, 4, v0
v_cmp_le_u32 vcc, 32, v0
s_mov_b64 s[80:81], vcc
v_cmp_eq_u32 vcc, 28, v1
s_mov_b64 s[82:83], vcc
v_cmp_lt_u32 vcc, 28, v1
s_mov_b64 s[84:85], vcc
""")
    for t in range(3):
        A=ACC+16*t
        a(f"""s_add_u32 s86, s77, {t}
s_lshl_b32 s87, s86, 6
s_add_u32 s87, s87, s79
s_lshl_b32 s87, s87, 11
s_cmp_ge_u32 s86, 16
s_cbranch_scc1 k1_e{t}n""")
        for r in range(16): a(f"v_mul_f32 v{A+r}, {hex(f2u(QSCALE))}, v{A+r}")
        a.label(f"k1_e{t}n")
        for r in range(8): a(f"v_cvt_pk_bf16_f32 v{A+r}, v{A+2*r}, v{A+2*r+1}")
        a(f"""s_cmp_ge_u32 s86, 32
s_cbranch_scc1 k1_e{t}v
s_cmp_ge_u32 s86, 16
s_cselect_b32 s88, 0x3f80, 0
v_mov_b32 v7, s88
v_cndmask_b32 v{A+6}, v{A+6}, v7, s[80:81]
v_cndmask_b32 v{A+7}, v{A+7}, 0, s[80:81]
s_branch k1_e{t}s""")
        a.label(f"k1_e{t}v")
        a("v_mov_b32 v7, 0x3f803f80")
        for r in range(8):
            a(f"v_cndmask_b32 v{A+r}, v{A+r}, v7, s[82:83]")
            a(f"v_cndmask_b32 v{A+r}, v{A+r}, 0, s[84:85]")
        a.label(f"k1_e{t}s")
        a(f"""buffer_store_dwordx4 {vr(A,4)}, v6, s[56:59], s87 offen
buffer_store_dwordx4 {vr(A+4,4)}, v6, s[56:59], s87 offen offset:1024""")
    ts(a,3,TSV)
    a('s_waitcnt vmcnt(0)')
    ts(a,4,TSV)
    wgstamp(a,0,1)
    tsflush(a,TSV,'k1_f1')
    a("s_endpgm")
    a.label("k1_u")
    srd(a,44,16,SZ_X); srd(a,48,22,SZ_W); srd(a,52,24,SZ_W)
    srd(a,56,42,SZ_HL,WS_HL); srd(a,60,18,SZ_VEC); srd(a,64,20,SZ_VEC); srd(a,68,30,SZ_VEC)
    T=112
    a(f"""s_sub_u32 s7, s7, 8
s_lshl_b32 s11, s7, 6
s_lshl_b32 s12, s10, 5
s_add_u32 s12, s12, s11
v_add_u32 v25, s12, v1
v_lshlrev_b32 v26, 1, v25
buffer_load_ushort v{T+4}, v26, s[60:63], 0 offen
buffer_load_ushort v{T+5}, v26, s[64:67], 0 offen
buffer_load_ushort v{T+6}, v26, s[68:71], 0 offen
""")
    a("""s_lshl_b32 s13, s6, 7
s_lshr_b32 s14, s3, 1
s_lshl_b32 s14, s14, 5
s_add_u32 s13, s13, s14
s_and_b32 s14, s3, 1
s_lshl_b32 s14, s14, 3
s_add_u32 s13, s13, s14
v_and_b32 v6, 3, v3
v_lshl_add_u32 v6, v2, 4, v6
v_add_u32 v6, s13, v6
v_mul_u32_u24 v6, 896, v6
v_add_u32 v14, v6, v12
v_add_u32 v15, v6, v13
v_add_u32 v15, 3584, v15
""")
    a("""s_lshl_b32 s13, s3, 3
s_add_u32 s13, s13, s11
v_add_u32 v6, s13, v3
v_mul_u32_u24 v6, 896, v6
s_and_b32 s14, s3, 1
s_lshl_b32 s14, s14, 6
v_xor_b32 v7, s14, v12
v_add_u32 v16, v6, v7
s_lshl_b32 s74, s3, 11
s_lshl_b32 s75, s3, 10
s_add_u32 s75, s75, 49152
""")
    a("""s_lshl_b32 s13, s10, 12
s_add_u32 s13, s13, 49152
v_lshrrev_b32 v7, 1, v1
v_and_b32 v7, 7, v7
v_xor_b32 v7, v7, v2
v_lshlrev_b32 v7, 4, v7
v_lshl_add_u32 v18, v1, 7, v7
v_add_u32 v18, s13, v18
v_xor_b32 v19, 32, v18
v_xor_b32 v20, 64, v18
v_xor_b32 v21, 0x60, v18
""")
    def dmau(c):
        sl=c%3; L=[]
        for q in range(2):
            L.append(f"s_add_u32 m0, s74, {sl*16384+q*1024}\ns_mov_b32 s76, {c*128}\nbuffer_load_dwordx4 v{14+q}, s[44:47], s76 offen lds")
        for q in range(2):
            L.append(f"s_add_u32 m0, s75, {sl*16384+q*8192}\ns_mov_b32 s76, {c*128}\nbuffer_load_dwordx4 v16, {sr(48+4*q,4)}, s76 offen lds")
        return L
    def readsu(c,ks):
        sl=c%3; F=128+(c&1)*48+ks*12
        a(f"ds_read_b128 {vr(F,4)}, v{8+ks} offset:{sl*16384}")
        for q in range(2):
            a(f"ds_read_b128 {vr(F+4+4*q,4)}, v{18+ks} offset:{sl*16384+q*8192}")
    def mfmau(c,ks):
        F=128+(c&1)*48+ks*12
        for q in range(2):
            C = "0" if (c==0 and ks==0) else vr(ACC+16*q,16)
            a(f"v_mfma_f32_32x32x16_bf16 {vr(ACC+16*q,16)}, {vr(F,4)}, {vr(F+4+4*q,4)}, {C}")
    ts(a,1,TSV)
    gemm_loop2(a,7,3,4,dmau,readsu,mfmau)
    ts(a,2,TSV)
    ssm_consts_math(a,T)
    lr,li,cr,ci=T,T+1,T+2,T+3
    a("s_nop 7")
    R=ACC; I=ACC+16
    a(f"""s_lshl_b32 s13, s6, 7
s_lshl_b32 s14, s9, 5
s_add_u32 s13, s13, s14
v_lshl_add_u32 v6, v2, 4, s13
v_mul_u32_u24 v6, 448, v6
v_add_u32 v6, v6, v25
v_lshlrev_b32 v6, 2, v6
""")
    for r in range(16):
        if r>0: cfma(a,R+r,I+r,lr,li,R+r-1,I+r-1,R+r,I+r,T+4)
        P=80+2*r
        a(f"v_mul_f32 v{T+5}, v{ci}, v{I+r}")
        a(f"v_fma_f32 v{P}, v{cr}, v{R+r}, -v{T+5}")
        a(f"v_mul_f32 v{T+5}, v{ci}, v{R+r}")
        a(f"v_fma_f32 v{P+1}, v{cr}, v{I+r}, v{T+5}")
        so=r*1792
        a(f"v_cvt_pk_bf16_f32 v{128+r}, v{P}, v{P+1}")
        a(f"s_mov_b32 s76, {so}")
        a(f"buffer_store_dword v{128+r}, v6, s[56:59], s76 offen")
    ts(a,3,TSV)
    L=T+4
    csq(a,L,L+1,lr,li,T+8); csq(a,L+2,L+3,L,L+1,T+8); csq(a,L,L+1,L+2,L+3,T+8); csq(a,L+2,L+3,L,L+1,T+8)
    a(f"""s_barrier
s_lshl_b32 s13, s9, 7
s_lshl_b32 s14, s10, 5
s_add_u32 s13, s13, s14
v_lshl_add_u32 v7, v2, 6, s13
v_add_u32 v7, v7, v1
v_lshlrev_b32 v7, 3, v7
ds_write_b64 v7, {vr(80+30,2)}
v_add_u32 v7, s14, v1
v_lshlrev_b32 v7, 3, v7
ds_write_b64 v7, {vr(L+2,2)} offset:4096
s_waitcnt lgkmcnt(0)
s_barrier
s_cmp_lg_u32 s3, 0
s_cbranch_scc1 k1_exit
""")
    srd(a,60,42,SZ_SR,WS_SR); srd(a,64,42,SZ_EC,WS_EC)
    a(f"v_lshlrev_b32 v7, 3, v0")
    for r in range(8): a(f"ds_read_b64 {vr(32+2*r,2)}, v7 offset:{r*512}")
    a(f"""ds_read_b64 v[48:49], v7 offset:4096
s_mul_i32 s13, s6, 8*3584
s_lshl_b32 s14, s7, 9
s_add_u32 s13, s13, s14
s_mul_i32 s15, s6, 3584
s_add_u32 s15, s15, s14
v_mov_b32 v50, 0
v_mov_b32 v51, 0
s_waitcnt lgkmcnt(0)
""")
    for r in range(8):
        S=50+2*r
        a(f"buffer_store_dwordx2 {vr(S,2)}, v7, s[60:63], s13 offen")
        a(f"s_add_u32 s13, s13, 3584")
        cfma(a,S+2,S+3,48,49,S,S+1,32+2*r,33+2*r,70)
    a(f"buffer_store_dwordx2 {vr(66,2)}, v7, s[64:67], s15 offen")
    ts(a,4,TSV)
    wgstamp(a,0,1)
    tsflush(a,TSV,'k1_f2')
    a.label("k1_exit")
    a("s_endpgm")
    return khead(N)+a.text(), kdesc(N,256 if os.environ.get('KSKEW') else 224)
```

```python
from common import *
from k1 import prologue
def pkcfma(a,d,l,h,c):
    a(f"v_pk_fma_f32 {vr(d,2)}, {vr(l,2)}, {vr(h,2)}, {vr(c,2)} op_sel:[0,0,0] op_sel_hi:[0,1,1]")
    a(f"v_pk_fma_f32 {vr(d,2)}, {vr(l,2)}, {vr(h,2)}, {vr(d,2)} op_sel:[1,1,0] op_sel_hi:[1,0,1] neg_lo:[1,0,0]")
def pkcmul(a,d,l,h):
    a(f"v_pk_mul_f32 {vr(d,2)}, {vr(l,2)}, {vr(h,2)} op_sel:[0,0] op_sel_hi:[0,1]")
    a(f"v_pk_fma_f32 {vr(d,2)}, {vr(l,2)}, {vr(h,2)}, {vr(d,2)} op_sel:[1,1,0] op_sel_hi:[1,0,1] neg_lo:[1,0,0]")

TSV=253
def k2():
    a=Asm(); N="k2_kernel"
    prologue(a,256,N)
    if os.environ.get('KSKEW'): a('s_waitcnt lgkmcnt(0)')
    wgstamp(a,1,0)
    ts(a,0,TSV)
    KV=16; O=80; Q=144; S=176; PK=208
    a("""s_and_b32 s4, s2, 7
s_lshl_b32 s4, s4, 1
s_lshr_b32 s5, s2, 3
s_and_b32 s5, s5, 1
s_add_u32 s4, s4, s5
s_lshr_b32 s5, s2, 4
v_and_b32 v1, 31, v0
v_lshrrev_b32 v2, 5, v0
v_lshlrev_b32 v3, 4, v0
s_waitcnt lgkmcnt(0)
""")
    srd(a,44,42,SZ_QF,WS_QF); srd(a,48,42,2*SZ_QF,WS_KF); srd(a,56,42,SZ_OB,WS_OB)
    QL=0x20100; KL=0x22100
    a(f"""s_lshl_b32 s11, s4, 6
s_lshl_b32 s12, s5, 2
s_add_u32 s12, s12, s11
s_lshl_b32 s12, s12, 11
s_lshl_b32 s8, s3, 10
s_add_u32 s12, s12, s8
s_add_u32 m0, s8, {QL}
s_lshl_b32 s14, s11, 11
buffer_load_dwordx4 v3, s[44:47], s12 offen lds
s_cmp_ge_u32 s3, 2
s_cbranch_scc1 k2_nok0
s_add_u32 m0, s8, {KL}
s_add_u32 s12, s14, s8
buffer_load_dwordx4 v3, s[48:51], s12 offen lds""")
    a.label("k2_nok0")
    a("""s_lshl_b32 s13, s3, 3
s_add_u32 s13, s13, s11
s_lshl_b32 s13, s13, 11
s_mov_b32 s90, s13""")
    def kvload(j,soff):
        b=KV+16*j
        a(f"s_add_u32 s15, s{soff}, 0x200000")
        a(f"buffer_load_dwordx4 {vr(b,4)}, v3, s[48:51], s{soff} offen")
        a(f"buffer_load_dwordx4 {vr(b+4,4)}, v3, s[48:51], s{soff} offen offset:1024")
        a(f"buffer_load_dwordx4 {vr(b+8,4)}, v3, s[48:51], s15 offen")
        a(f"buffer_load_dwordx4 {vr(b+12,4)}, v3, s[48:51], s15 offen offset:1024")
        a(f"s_add_u32 s{soff}, s{soff}, 2048")
    for j in range(4): kvload(j,90)
    a(f"""v_add_u32 v8, {QL}, v3
s_waitcnt vmcnt(16)
s_barrier""")
    for i in range(8): a(f"ds_read_b128 {vr(Q+4*i,4)}, v8 offset:{i*1024}")
    T=112; HLR=224; LAM=240; HR=242; P2=250; P4=251
    a("""s_cmp_ge_u32 s3, 4
s_cbranch_scc1 k2_noside1""")
    srd(a,60,18,SZ_VEC); srd(a,64,20,SZ_VEC); srd(a,68,30,SZ_VEC)
    srd(a,72,42,SZ_HL,WS_HL); srd(a,76,42,SZ_SR,WS_SR); srd(a,80,42,SZ_EC,WS_EC); srd(a,84,42,SZ_HB,WS_HB)
    a(f"""s_lshr_b32 s6, s2, 1
s_and_b32 s7, s2, 1
s_mul_i32 s7, s7, 224
s_lshl_b32 s8, s3, 6
v_add_u32 v9, s8, v0
v_cmp_gt_u32 vcc, 224, v9
v_add_u32 v9, s7, v9
v_mov_b32 v10, 0x0fffffff
v_lshlrev_b32 v{P2}, 1, v9
v_cndmask_b32 v9, v10, v9, vcc
v_lshlrev_b32 v{P2}, 1, v9
v_lshlrev_b32 v{P4}, 2, v9
v_lshlrev_b32 v10, 3, v9
buffer_load_ushort v{T+4}, v{P2}, s[60:63], 0 offen
buffer_load_ushort v{T+5}, v{P2}, s[64:67], 0 offen
buffer_load_ushort v{T+6}, v{P2}, s[68:71], 0 offen
s_mul_i32 s8, s6, 3584
buffer_load_dwordx2 {vr(HR,2)}, v10, s[76:79], s8 offen
s_lshr_b32 s9, s6, 3
s_mov_b32 s10, 0
""")
    for i in range(15):
        a(f"""s_cmp_le_u32 s9, {i}
s_cbranch_scc1 k2_noside1
buffer_load_dwordx2 {vr(80+2*i,2)}, v10, s[80:83], s10 offen
s_add_u32 s10, s10, 3584""")
    a.label("k2_noside1")
    ts(a,1,TSV)
    a("""v_cmp_le_u32 s[88:89], 32, v0
s_mov_b32 s91, 1
s_mov_b32 s95, 0""")
    a.label("k2_restart")
    a(f"""v_add_u32 v8, {KL}, v3
ds_read_b128 {vr(PK,4)}, v8
ds_read_b128 {vr(PK+4,4)}, v8 offset:1024
s_waitcnt lgkmcnt(0)""")
    for qt in range(4):
        a(f"v_cndmask_b32 v{Q+8*qt+6}, v{Q+8*qt+6}, 0, s[88:89]")
        a(f"v_mov_b32 v{4+qt}, 0xff800000")
    a("s_mov_b32 s92, s14\ns_mov_b32 s93, s91")
    a.label("k2_maxloop")
    for qt in range(4):
        sb=S+16*(qt&1)
        a(f"v_mfma_f32_32x32x16_bf16 {vr(sb,16)}, {vr(PK,4)}, {vr(Q+8*qt,4)}, 0")
        a(f"v_mfma_f32_32x32x16_bf16 {vr(sb,16)}, {vr(PK+4,4)}, {vr(Q+8*qt+4,4)}, {vr(sb,16)}")
        if qt&1:
            a("s_nop 15")
            for q2 in (qt-1,qt):
                s2=S+16*(q2&1)
                for r in range(0,16,2): a(f"v_max3_f32 v{4+q2}, v{s2+r}, v{s2+r+1}, v{4+q2}")
            a("s_nop 7")
    a(f"""s_sub_u32 s93, s93, 1
s_cmp_eq_u32 s93, 0
s_cbranch_scc1 k2_maxdone
s_add_u32 s92, s92, 2048
buffer_load_dwordx4 {vr(PK,4)}, v3, s[48:51], s92 offen
buffer_load_dwordx4 {vr(PK+4,4)}, v3, s[48:51], s92 offen offset:1024
s_waitcnt vmcnt(0)
s_branch k2_maxloop""")
    a.label("k2_maxdone")
    for qt in range(4):
        m=4+qt
        a(f"""v_mov_b32 v8, v{m}
s_nop 1
v_permlane32_swap_b32 v8, v{m}
s_nop 1
v_max_f32 v{m}, v8, v{m}
v_add_u32 v8, 0xffff, v{m}
v_cmp_lt_f32 vcc, 0, v{m}
s_nop 1
v_cndmask_b32 v8, v{m}, v8, vcc
v_lshrrev_b32 v8, 16, v8
v_xor_b32 v8, 0x8000, v8
v_cndmask_b32 v{Q+8*qt+6}, v{Q+8*qt+6}, v8, s[88:89]""")
    ts(a,2,TSV)
    a("""s_cmp_ge_u32 s3, 4
s_cbranch_scc1 k2_noside2
s_cmp_lg_u32 s95, 0
s_cbranch_scc1 k2_noside2
s_mov_b32 s95, 1
s_waitcnt vmcnt(0)""")
    ssm_consts_math(a,T,want_coef=False)
    a(f"v_mov_b32 v{LAM}, v{T}\nv_mov_b32 v{LAM+1}, v{T+1}")
    P=[LAM]+[T+10+2*i for i in range(7)]
    for i in range(7): pkcmul(a,P[i+1],P[i],P[i])
    H=T+24; H2=T+26
    a(f"v_mov_b32 v{H}, 0\nv_mov_b32 v{H+1}, 0")
    for i in range(15):
        a(f"""s_cmp_le_u32 s9, {i}
s_cbranch_scc1 k2_hdone""")
        pkcfma(a,80+2*i,P[7],H,80+2*i)
        a(f"v_mov_b32 v{H}, v{80+2*i}\nv_mov_b32 v{H+1}, v{81+2*i}")
    a.label("k2_hdone")
    for bit,pw in ((1,4),(2,5),(4,6)):
        a(f"""s_bitcmp0_b32 s6, {bit.bit_length()-1}
s_cbranch_scc1 k2_pw{bit}""")
        pkcmul(a,H2,P[pw],H)
        a(f"v_mov_b32 v{H}, v{H2}\nv_mov_b32 v{H+1}, v{H2+1}")
        a.label(f"k2_pw{bit}")
    a(f"v_pk_add_f32 {vr(HR,2)}, {vr(HR,2)}, {vr(H,2)}")
    a.label("k2_noside2")
    ts(a,3,TSV)
    steps=[(kt,qt) for kt in range(8) for qt in range(4)]
    def smf(i,part):
        kt,qt=steps[i]; sb=S+16*(i&1); kb=KV+16*(kt%4)
        C="0" if part==0 else vr(sb,16)
        a(f"v_mfma_f32_32x32x16_bf16 {vr(sb,16)}, {vr(kb+4*part,4)}, {vr(Q+8*qt+4*part,4)}, {C}")
    def omf(i,part):
        kt,qt=steps[i]; vb=KV+16*(kt%4)+8; ob=O+16*qt
        C="0" if (kt==0 and part==0) else vr(ob,16)
        a(f"v_mfma_f32_32x32x16_bf16 {vr(ob,16)}, {vr(vb+4*part,4)}, {vr(PK+8*(i&1)+4*part,4)}, {C}")
    a("s_waitcnt vmcnt(12)")
    smf(0,0); smf(0,1); a("s_nop 15")
    n=len(steps)
    for i in range(n):
        kt,qt=steps[i]; sb=S+16*(i&1)
        nx=i+1<n
        if nx and steps[i+1][1]==0:
            k2=steps[i+1][0]
            issued=min(7,kt+3); a(f"s_waitcnt vmcnt({(issued-k2)*4})")
        def ex(r0):
            for r in range(r0,r0+4): a(f"v_exp_f32 v{sb+r}, v{sb+r}")
        if nx: smf(i+1,0)
        ex(0)
        if i>0: omf(i-1,0)
        ex(4)
        if nx: smf(i+1,1)
        ex(8)
        if i>0: omf(i-1,1)
        if qt==0 and kt>=1 and kt+3<8: kvload((kt+3)%4,90)
        if kt==7 and qt==0:
            a("s_cmp_ge_u32 s3, 4\ns_cbranch_scc1 k2_nohl\ns_mul_i32 s8, s6, 16*1792")
            for r in range(16):
                a(f"buffer_load_dword v{HLR+r}, v{P4}, s[72:75], s8 offen\ns_add_u32 s8, s8, 1792")
            a.label("k2_nohl")
        ex(12)
        for r in range(8): a(f"v_cvt_pk_bf16_f32 v{PK+8*(i&1)+r}, v{sb+2*r}, v{sb+2*r+1}")
    a("s_nop 1"); omf(n-1,0); omf(n-1,1)
    a("s_nop 15")
    ts(a,4,TSV)
    a(f"""s_lshl_b32 s8, s3, 14
v_add_u32 v8, s8, v3""")
    for qt in range(4):
        for g in range(4): a(f"ds_write_b128 v8, {vr(O+16*qt+4*g,4)} offset:{qt*4096+g*1024}")
    a("""s_cmp_ge_u32 s3, 4
s_cbranch_scc1 k2_noside3
s_mul_i32 s8, s6, 16*1792
s_add_u32 s10, s8, 896
s_waitcnt vmcnt(0)""")
    W=[244,246]
    a(f"v_mov_b32 v244, v{HR}\nv_mov_b32 v245, v{HR+1}")
    for r in range(16):
        src=W[r&1]; dst=W[(r+1)&1]
        pkcmul(a,dst,LAM,src)
        a(f"""v_lshlrev_b32 v248, 16, v{HLR+r}
v_and_b32 v249, 0xffff0000, v{HLR+r}
v_pk_add_f32 v[248:249], v[248:249], {vr(dst,2)}
v_cvt_pk_bf16_f32 v{HLR+r}, v248, -v249
buffer_store_short v{HLR+r}, v{P2}, s[84:87], s8 offen
buffer_store_short_d16_hi v{HLR+r}, v{P2}, s[84:87], s10 offen
s_add_u32 s8, s8, 1792
s_add_u32 s10, s10, 1792""")
    a.label("k2_noside3")
    a(f"""s_lshr_b32 s8, s3, 1
s_lshl_b32 s9, s8, 12
s_and_b32 s10, s3, 1
s_lshl_b32 s12, s10, 11
s_add_u32 s12, s12, s9
v_add_u32 v8, s12, v3
v_lshlrev_b32 v9, 4, v1
s_add_u32 s9, s9, 3584
v_add_u32 v9, s9, v9
v_add_u32 v10, 0x10000, v8
v_add_u32 v11, 0x10000, v9
s_waitcnt lgkmcnt(0)
s_barrier""")
    R=16
    for w in range(8):
        b=(8,9) if w<4 else (10,11); o=(w&3)*16384
        a(f"ds_read_b128 {vr(R+9*w+0,4)}, v{b[0]} offset:{o}") if False else None
    for half in range(2):
        for w in range(4*half,4*half+4):
            b=(8,9) if w<4 else (10,11); o=(w&3)*16384
            a(f"ds_read_b128 {vr(R+8*w,4)}, v{b[0]} offset:{o}")
            a(f"ds_read_b128 {vr(R+8*w+4,4)}, v{b[0]} offset:{o+1024}")
            a(f"ds_read_b32 v{96+w}, v{b[1]} offset:{o}")
        if half==0: a("s_waitcnt lgkmcnt(0)")
    a("s_waitcnt lgkmcnt(0)")
    for w in range(1,8):
        for r in range(0,8,2): a(f"v_pk_add_f32 {vr(R+r,2)}, {vr(R+r,2)}, {vr(R+8*w+r,2)}")
        a(f"v_add_f32 v96, v96, v{96+w}")
    a(f"""v_cmp_ngt_f32 vcc, 0x4e800000, v96
s_nop 1
s_cmp_lg_u64 vcc, 0
s_cselect_b32 s94, 1, 0
v_mov_b32 v12, s94
v_mov_b32 v13, 0x20000
s_lshl_b32 s8, s3, 2
v_add_u32 v13, s8, v13
ds_write_b32 v13, v12
v_mov_b32 v13, 0x20000
s_waitcnt lgkmcnt(0)
s_barrier
ds_read_b128 v[104:107], v13
ds_read_b128 v[108:111], v13 offset:16
s_waitcnt lgkmcnt(0)
v_or3_b32 v104, v104, v105, v106
v_or3_b32 v104, v104, v107, v108
v_or3_b32 v104, v104, v109, v110
v_or_b32 v104, v104, v111
s_nop 0
v_readfirstlane_b32 s94, v104
s_cmp_eq_u32 s94, 0
s_cbranch_scc1 k2_fin
s_cmp_eq_u32 s91, 64
s_cbranch_scc1 k2_fin
s_mov_b32 s91, 64
s_mov_b32 s90, s13""")
    for j in range(4): kvload(j,90)
    a("""s_waitcnt vmcnt(0)
s_branch k2_restart""")
    a.label("k2_fin")
    ts(a,5,TSV)
    a("v_rcp_f32 v96, v96\ns_nop 0")
    for r in range(8): a(f"v_mul_f32 v{R+r}, v{R+r}, v96")
    for r in range(4): a(f"v_cvt_pk_bf16_f32 v{R+r}, v{R+2*r}, v{R+2*r+1}")
    a(f"""s_lshl_b32 s8, s5, 7
s_lshr_b32 s9, s3, 1
s_lshl_b32 s9, s9, 5
s_add_u32 s8, s8, s9
v_add_u32 v8, s8, v1
v_mul_u32_u24 v8, 896, v8
s_mul_i32 s9, s4, 56
s_and_b32 s10, s3, 1
s_lshl_b32 s12, s10, 5
s_add_u32 s9, s9, s12
v_lshl_add_u32 v8, v2, 3, v8
v_add_u32 v8, s9, v8
buffer_store_dwordx2 {vr(R,2)}, v8, s[56:59], 0 offen
s_cmp_eq_u32 s10, 0
s_cbranch_scc1 k2_st2
s_mov_b32 exec_hi, 0""")
    a.label("k2_st2")
    a(f"buffer_store_dwordx2 {vr(R+2,2)}, v8, s[56:59], 0 offen offset:16")
    a('s_mov_b64 exec, -1') if DBG else None
    ts(a,6,TSV)
    wgstamp(a,1,1)
    tsflush(a,TSV,'k2_f1')
    a.label("k2_exit")
    a("s_endpgm")
    return khead(N)+a.text(), kdesc(N,256 if os.environ.get('KSKEW') else 252,sgpr=96)
```

```python
from common import *
from k1 import prologue
TSV=168
def k3():
    a=Asm(); N="k3_kernel"
    prologue(a,224,N)
    if os.environ.get('KSKEW'): a('s_waitcnt lgkmcnt(0)')
    wgstamp(a,2,0)
    ts(a,0,TSV)
    a("""s_and_b32 s4, s2, 7
s_lshr_b32 s5, s2, 3
s_and_b32 s6, s5, 1
s_lshl_b32 s8, s4, 1
s_add_u32 s6, s6, s8
s_lshr_b32 s7, s5, 1
s_and_b32 s9, s3, 3
s_lshr_b32 s10, s3, 2
"""+("s_mov_b32 s6, 0\ns_cmp_ge_u32 s7, 7\ns_cselect_b32 s7, 7, 0\n" if '1' in os.environ.get('KEXP','') else "")+"""
v_and_b32 v1, 31, v0
v_lshrrev_b32 v2, 5, v0
v_lshrrev_b32 v3, 3, v0
v_and_b32 v4, 7, v0
v_lshrrev_b32 v5, 4, v0
s_lshl_b32 s11, s9, 5
v_add_u32 v6, s11, v1
v_lshrrev_b32 v7, 1, v1
v_and_b32 v7, 7, v7
v_xor_b32 v7, v7, v2
v_lshlrev_b32 v7, 4, v7
v_lshl_add_u32 v8, v6, 7, v7
v_xor_b32 v9, 32, v8
v_xor_b32 v10, 64, v8
v_xor_b32 v11, 0x60, v8
v_add_u32 v24, 0x10000, v8
v_add_u32 v25, 0x10000, v9
v_add_u32 v26, 0x10000, v10
v_add_u32 v27, 0x10000, v11
v_xor_b32 v12, v4, v5
v_lshlrev_b32 v12, 4, v12
v_xor_b32 v13, 64, v12
"""+("v_lshlrev_b32 v12, 4, v4\nv_lshlrev_b32 v13, 4, v4\n" if '2' in os.environ.get('KEXP','') else "")+"""
s_lshl_b32 s74, s3, 11
s_lshl_b32 s75, s3, 10
s_add_u32 s75, s75, 98304
s_lshl_b32 s11, s6, 7
s_lshl_b32 s12, s3, 4
s_add_u32 s11, s11, s12
v_add_u32 v22, s11, v3
s_waitcnt lgkmcnt(0)
""")
    srd(a,56,40,SZ_OUT)
    a("""s_lshl_b32 s11, s6, 7
s_lshl_b32 s12, s9, 5
s_add_u32 s11, s11, s12
v_add_u32 v23, s11, v1
s_cmp_ge_u32 s7, 7
s_cbranch_scc1 k3_o
""")
    ACC=32; FB=96
    def aread(c,ks):
        sl=c%6; F=FB+(c&1)*32+ks*8
        if sl<4: a(f"ds_read_b128 {vr(F,4)}, v{8+ks} offset:{sl*16384}")
        else: a(f"ds_read_b128 {vr(F,4)}, v{24+ks} offset:{(sl-4)*16384}")
    def mf(c,ks):
        F=FB+(c&1)*32+ks*8
        C="0" if (c==0 and ks==0) else vr(ACC,16)
        a(f"v_mfma_f32_32x32x16_bf16 {vr(ACC,16)}, {vr(F+4,4)}, {vr(F,4)}, {C}")
    def adma(c):
        sl=c%6
        return [f"s_add_u32 m0, s74, {sl*16384+q*1024}\ns_mov_b32 s76, {c*128}\nbuffer_load_dwordx4 v{14+q}, s[44:47], s76 offen lds" for q in range(2)]
    srd(a,44,42,SZ_HB,WS_HB); srd(a,48,26,SZ_W); srd(a,52,28,SZ_W); srd(a,60,16,SZ_X); srd(a,64,32,SZ_VEC)
    a("""v_mul_u32_u24 v6, 1792, v22
v_add_u32 v14, v6, v12
v_add_u32 v15, v6, v13
v_add_u32 v15, 14336, v15
s_lshl_b32 s11, s7, 6
s_lshl_b32 s13, s3, 3
s_add_u32 s13, s13, s11
v_add_u32 v6, s13, v3
v_mul_u32_u24 v6, 896, v6
s_and_b32 s14, s3, 1
s_lshl_b32 s14, s14, 6
v_xor_b32 v7, s14, v12
v_add_u32 v16, v6, v7
s_lshl_b32 s13, s10, 12
s_add_u32 s13, s13, 98304
v_lshrrev_b32 v7, 1, v1
v_and_b32 v7, 7, v7
v_xor_b32 v7, v7, v2
v_lshlrev_b32 v7, 4, v7
v_lshl_add_u32 v18, v1, 7, v7
v_add_u32 v18, s13, v18
v_xor_b32 v19, 32, v18
v_xor_b32 v20, 64, v18
v_xor_b32 v21, 0x60, v18
""")
    a("""s_lshl_b32 s12, s10, 5
s_add_u32 s12, s12, s11
s_lshl_b32 s15, s12, 1
v_mul_u32_u24 v6, 896, v23
v_lshl_add_u32 v6, v2, 3, v6
v_lshlrev_b32 v7, 3, v2
""")
    for g in range(4):
        a(f"buffer_load_dwordx2 {vr(64+2*g,2)}, v6, s[60:63], s15 offen offset:{16*g}")
        a(f"buffer_load_dwordx2 {vr(72+2*g,2)}, v7, s[64:67], s15 offen offset:{16*g}")
    def dmay(c):
        return adma(c)+[f"s_add_u32 m0, s75, {(c%6)*8192}\ns_mov_b32 s76, {(c%7)*128}\nbuffer_load_dwordx4 v16, {sr(48+4*(c//7),4)}, s76 offen lds"]
    def readsy(c,ks):
        aread(c,ks)
        a(f"ds_read_b128 {vr(FB+(c&1)*32+ks*8+4,4)}, v{18+ks} offset:{(c%6)*8192}")
    ts(a,1,TSV)
    gemm_loop2(a,14,6,3,dmay,readsy,mf)
    a('s_nop 7')
    ts(a,2,TSV)
    for g in range(4):
        for i in range(4):
            X=64+2*g+(i>>1); Dd=72+2*g+(i>>1); t=80+4*g+i
            if i&1:
                a(f"v_and_b32 v{t}, 0xffff0000, v{X}\nv_and_b32 v17, 0xffff0000, v{Dd}")
            else:
                a(f"v_lshlrev_b32 v{t}, 16, v{X}\nv_lshlrev_b32 v17, 16, v{Dd}")
            a(f"v_mul_f32 v{t}, v{t}, v17")
        for i in (0,2):
            t=80+4*g+i
            a(f"v_cvt_pk_bf16_f32 v17, v{t}, v{t+1}")
            a(f"v_lshlrev_b32 v{t}, 16, v17\nv_and_b32 v{t+1}, 0xffff0000, v17")
    for r in range(16): a(f"v_fma_f32 v{80+r}, v{ACC+r}, 2.0, v{80+r}")
    a("""s_lshl_b32 s15, s12, 2
v_mul_u32_u24 v6, 3584, v23
v_lshl_add_u32 v6, v2, 4, v6
""")
    for g in range(4): a(f"buffer_store_dwordx4 {vr(80+4*g,4)}, v6, s[56:59], s15 offen offset:{32*g}")
    ts(a,3,TSV)
    wgstamp(a,2,1)
    tsflush(a,TSV,'k3_f1')
    a("s_endpgm")
    a.label("k3_o")
    srd(a,44,42,SZ_OB,WS_OB); srd(a,48,38,SZ_W)
    a("""s_sub_u32 s7, s7, 7
v_mul_u32_u24 v6, 896, v22
v_add_u32 v14, v6, v12
v_add_u32 v15, v6, v13
v_add_u32 v15, 7168, v15
s_lshl_b32 s13, s3, 3
v_add_u32 v6, s13, v3
v_mul_u32_u24 v6, 896, v6
v_and_b32 v7, 1, v5
v_lshlrev_b32 v7, 2, v7
v_xor_b32 v7, v7, v4
v_lshl_add_u32 v16, v7, 4, v6
s_lshl_b32 s13, s7, 7
v_add_u32 v16, s13, v16
v_and_b32 v6, 15, v0
v_lshrrev_b32 v7, 2, v6
v_and_b32 v17, 3, v0
v_lshlrev_b32 v17, 3, v17
v_and_b32 v6, 1, v5
v_lshl_add_u32 v17, v6, 5, v17
s_lshl_b32 s14, s10, 6
v_add_u32 v17, s14, v17
v_lshrrev_b32 v6, 1, v7
v_lshlrev_b32 v6, 6, v6
v_xor_b32 v17, v17, v6
v_lshrrev_b32 v6, 1, v5
v_lshl_add_u32 v6, v6, 3, v7
v_lshl_add_u32 v18, v6, 7, v17
v_add_u32 v18, 98304, v18
""")
    def dmao(c):
        return adma(c)+[f"s_add_u32 m0, s75, {(c%6)*8192}\ns_mov_b32 s76, {c*64*896}\nbuffer_load_dwordx4 v16, s[48:51], s76 offen lds"]
    def readso(c,ks):
        aread(c,ks)
        o=(c%6)*8192+ks*2048; F=FB+(c&1)*32+ks*8+4
        a(f"ds_read_b64_tr_b16 {vr(F,2)}, v18 offset:{o}")
        a(f"ds_read_b64_tr_b16 {vr(F+2,2)}, v18 offset:{o+512}")
    ts(a,1,TSV)
    gemm_loop2(a,7,6,3,dmao,readso,mf)
    ts(a,2,TSV)
    a("""s_nop 15
s_lshl_b32 s11, s7, 6
s_lshl_b32 s12, s10, 5
s_add_u32 s12, s12, s11
s_lshl_b32 s15, s12, 2
s_add_u32 s15, s15, 1792
v_mul_u32_u24 v6, 3584, v23
v_lshl_add_u32 v6, v2, 4, v6
""")
    for r in range(0,16,2):
        a(f"v_cvt_pk_bf16_f32 v17, v{ACC+r}, v{ACC+r+1}")
        a(f"v_lshlrev_b32 v{80+r}, 16, v17\nv_and_b32 v{81+r}, 0xffff0000, v17")
    for g in range(4): a(f"buffer_store_dwordx4 {vr(80+4*g,4)}, v6, s[56:59], s15 offen offset:{32*g}")
    ts(a,3,TSV)
    wgstamp(a,2,1)
    tsflush(a,TSV,'k3_f2')
    a.label("k3_exit")
    a("s_endpgm")
    if '3' in os.environ.get('KEXP',''):
        import re
        a.l=[re.sub(r'buffer_load_dwordx4 (v\d+), (.*) offen lds',r'buffer_load_dwordx4 v[160:163], \1, \2 offen',x) for x in a.l]
    if '4' in os.environ.get('KEXP',''):
        a.l=[x for x in a.l if 'ds_read' not in x]
    for k,fl in (('5','nt'),('6','sc1'),('7','sc0 sc1'),('8','sc0')):
        if k in os.environ.get('KEXP',''):
            a.l=[x.replace('offen lds','offen '+fl+' lds') for x in a.l]
    return khead(N)+a.text(), kdesc(N,256 if os.environ.get('KSKEW') else 164)
```
